```python
import torch

def _softmax(x, axis=-1):
    return torch.softmax(x, dim=axis)
def _gelu(x):
    return torch.nn.functional.gelu(x, approximate="tanh")
def _silu(x):
    return torch.nn.functional.silu(x)
def _sigmoid(x):
    return torch.sigmoid(x)
def _layernorm(x, axis=-1, eps=1e-5):
    m = x.mean(dim=axis, keepdim=True)
    v = x.var(dim=axis, keepdim=True, unbiased=False)
    return (x - m) / torch.sqrt(v + eps)
def _scatter_add(tgt, idx, src, axis=0):
    return tgt.clone().index_add_(axis, idx, src)
def _segment_sum(src, seg, n):
    out = torch.zeros((n,) + src.shape[1:], dtype=src.dtype)
    return out.index_add_(0, seg, src)
def _pad(x, pw):
    flat = tuple(v for pair in reversed(pw) for v in pair)
    return torch.nn.functional.pad(x, flat)

kernel_name = 'recurrent_scan__gqa_block_cached__mixer_token_mlp__decode'

def setup_inputs():

    _w = (lambda a: (lambda t: t.to(torch.bfloat16) if t.is_floating_point() else t)(torch.as_tensor(a)))
    def _A_setup():
        B, Sq, D = 8, 1, 640
        Hq, Hkv, Sk, Dh = 32, 32, 4096, 128
        assert Hq % Hkv == 0, (Hq, Hkv)
        return {
            "x": _w((lambda *s: torch.randn(*s, dtype=torch.bfloat16) * 0.4)(B, Sq, D)),
            "k_cache": _w((lambda *s: torch.randn(*s, dtype=torch.bfloat16) * 1.6)(B, Hkv, Sk, Dh)),
            "v_cache": _w((lambda *s: torch.randn(*s, dtype=torch.bfloat16) * 1.6)(B, Hkv, Sk, Dh)),
            "wq": _w((lambda *s: torch.randn(*s, dtype=torch.bfloat16) * 1.6)(D, Hq * Dh) * (D ** -0.5)),
            "wo": _w((lambda *s: torch.randn(*s, dtype=torch.bfloat16) * 1.6)(Hq * Dh, D) * ((Hq * Dh) ** -0.5)),
        }
    _A_in = _A_setup()

    def _B_setup():
        B, S, D, F = 8, 1, 640, 1728
        return {
            "x": _w((lambda *s: torch.randn(*s, dtype=torch.bfloat16) * 0.4)(B, S, D)),
            "w1": _w((lambda *s: torch.randn(*s, dtype=torch.bfloat16) * 1.6)(S, F) * (S ** -0.5)),
            "b1": _w((lambda *s: torch.randn(*s, dtype=torch.bfloat16) * 1.6)(F) * 0.02),
            "w2": _w((lambda *s: torch.randn(*s, dtype=torch.bfloat16) * 1.6)(F, S) * (F ** -0.5)),
            "b2": _w((lambda *s: torch.randn(*s, dtype=torch.bfloat16) * 1.6)(S) * 0.02),
        }
    _B_in = _B_setup()

    return {
        "A_x": _A_in["x"],
        "A_k_cache": _A_in["k_cache"],
        "A_v_cache": _A_in["v_cache"],
        "A_wq": _A_in["wq"],
        "A_wo": _A_in["wo"],
        "B_x": _B_in["x"],
        "B_w1": _B_in["w1"],
        "B_b1": _B_in["b1"],
        "B_w2": _B_in["w2"],
        "B_b2": _B_in["b2"],
    }

def reference(A_x, A_k_cache, A_v_cache, A_wq, A_wo, B_x, B_w1, B_b1, B_w2, B_b2):
    def _A_ref(x, k_cache, v_cache, wq, wo):
        B, Sq, D = x.shape
        Hq, Dh = 32, 128
        Hkv = k_cache.shape[1]
        rep = Hq // Hkv
        q = (lambda x, *d: x.permute(*d))((x @ wq).reshape(B, Sq, Hq, Dh), 0, 2, 1, 3)
        k = (lambda x, n, axis: torch.repeat_interleave(x, n, dim=axis))(k_cache, rep, axis=1)
        v = (lambda x, n, axis: torch.repeat_interleave(x, n, dim=axis))(v_cache, rep, axis=1)
        scores = torch.einsum("bhqd,bhkd->bhqk", q, k) * (Dh ** -0.5)
        p = _softmax(scores, axis=-1)
        o = torch.einsum("bhqk,bhkd->bhqd", p, v)
        return (lambda x, *d: x.permute(*d))(o, 0, 2, 1, 3).reshape(B, Sq, Hq * Dh) @ wo

    def _B_ref(x, w1, b1, w2, b2):
        B, S, D = x.shape
        h = _layernorm(x, axis=-1)
        u = torch.einsum("bsd,sf->bdf", h, w1) + b1
        u = _gelu(u)
        y = torch.einsum("bdf,fs->bds", u, w2) + b2
        return (lambda x, *d: x.permute(*d))(y, 0, 2, 1)

    x = A_x
    xn = _layernorm(x, axis=-1)
    s = _A_ref(xn, A_k_cache, A_v_cache, A_wq, A_wo)
    g = _silu(_B_ref(xn, B_w1, B_b1, B_w2, B_b2))
    return x + s * g
```

```python
import re

REG_RE = re.compile(r'\b(v|s|a)(\d+)\b|\b(v|s|a)\[(\d+):(\d+)\]|\b(vcc|exec|exec_lo|exec_hi|vcc_lo|vcc_hi|m0|scc)\b')

TRANS = ('v_exp_f32', 'v_log_f32', 'v_rcp_f32', 'v_rsq_f32', 'v_sqrt_f32', 'v_sin_f32', 'v_cos_f32', 'v_rcp_iflag_f32')


def regs_of(tok):
    out = set()
    for m in REG_RE.finditer(tok):
        if m.group(1):
            out.add(m.group(1) + m.group(2))
        elif m.group(3):
            for i in range(int(m.group(4)), int(m.group(5)) + 1):
                out.add(m.group(3) + str(i))
        else:
            n = m.group(6)
            if n == 'vcc':
                out |= {'vcc_lo', 'vcc_hi'}
            elif n == 'exec':
                out |= {'exec_lo', 'exec_hi'}
            else:
                out.add(n)
    return out


def split_ops(rest):
    ops, cur, depth = [], '', 0
    for ch in rest:
        if ch == '[':
            depth += 1
        if ch == ']':
            depth -= 1
        if ch == ',' and depth == 0:
            ops.append(cur.strip())
            cur = ''
        else:
            cur += ch
    if cur.strip():
        ops.append(cur.strip())
    return ops


class Ins:
    pass


def parse(line):
    s = line.split(';')[0].strip()
    parts = s.split(None, 1)
    mn = parts[0]
    rest = parts[1] if len(parts) > 1 else ''
    ops = split_ops(rest)
    mods = ''
    if ops:
        p = ops[-1].split(None, 1)
        ops[-1] = p[0]
        if len(p) > 1:
            mods = p[1]
    i = Ins()
    i.text = line
    i.mn = mn
    base = re.sub(r'_(e32|e64|dpp|sdwa)$', '', mn)
    i.base = base
    i.ops = ops
    i.mods = mods
    i.dpp = mn.endswith('_dpp') or 'row_' in mods or 'quad_perm' in mods
    i.valu = mn.startswith('v_') and not mn.startswith('v_mfma')
    i.mfma = mn.startswith('v_mfma')
    i.trans = base in TRANS
    i.dlop = base.startswith('v_dot')
    i.vmem = mn.startswith('buffer_') or mn.startswith('global_')
    i.ds = mn.startswith('ds_')
    i.salu = mn.startswith('s_')
    i.w = set()
    i.r = set()
    i.srcc = set()
    i.srcab = set()
    i.store_data = set()
    i.lanesel = set()
    R = [regs_of(o) for o in ops]
    allr = set().union(*R) if R else set()
    if i.mfma:
        i.w = R[0]
        i.srcab = R[1] | R[2]
        i.srcc = R[3]
        i.r = i.srcab | i.srcc
    elif i.valu:
        if base.startswith('v_permlane') and 'swap' in base:
            i.w = R[0] | R[1]
            i.r = R[0] | R[1]
        elif base in ('v_add_co_u32', 'v_sub_co_u32', 'v_addc_co_u32', 'v_subb_co_u32', 'v_div_scale_f32'):
            i.w = R[0] | R[1]
            i.r = set().union(*R[2:])
        elif base == 'v_nop':
            pass
        else:
            i.w = R[0]
            i.r = set().union(*R[1:]) if len(R) > 1 else set()
            if base in ('v_fmac_f32', 'v_dot2c_f32_bf16', 'v_mac_f32', 'v_writelane_b32'):
                i.r |= R[0]
                if base == 'v_dot2c_f32_bf16':
                    i.srcc = R[0]
                    i.srcab = R[1] | R[2]
            if base == 'v_dot2_f32_bf16':
                i.srcc = R[3]
                i.srcab = R[1] | R[2]
            if base in ('v_readlane_b32', 'v_writelane_b32'):
                i.lanesel = R[2]
            if base == 'v_div_fmas_f32':
                i.r |= {'vcc_lo', 'vcc_hi'}
            if base == 'v_cndmask_b32' and len(ops) == 3:
                i.r |= {'vcc_lo', 'vcc_hi'}
    elif i.vmem:
        if 'load' in mn and 'lds' not in mods.split():
            i.w = R[0]
            i.r = set().union(*R[1:])
        elif 'atomic' in mn and 'sc0' in mods.split():
            i.w = R[0]
            i.r = allr
            i.store_data = R[0]
        else:
            i.r = allr
            if mn.startswith('buffer_'):
                i.store_data = R[0]
            else:
                i.store_data = R[1] if len(R) > 1 else set()
    elif i.ds:
        if mn.startswith('ds_read') or mn.startswith('ds_bpermute') or mn.startswith('ds_swizzle') or mn.startswith('ds_permute'):
            i.w = R[0]
            i.r = set().union(*R[1:])
        else:
            i.r = allr
    elif i.salu:
        if mn.startswith('s_cmp') or mn in ('s_waitcnt', 's_nop', 's_barrier', 's_branch', 's_endpgm', 's_sleep', 's_setprio') or mn.startswith('s_cbranch'):
            i.r = allr
        else:
            i.w = R[0] if R else set()
            i.r = set().union(*R[1:]) if len(R) > 1 else set()
            if 'saveexec' in mn:
                i.w |= {'exec_lo', 'exec_hi'}
    i.states = 1
    if mn == 's_nop':
        i.states = int(ops[0], 0) + 1
    return i


def mfma_passes(i):
    if '32x32' in i.mn:
        return 8
    if '16x16x4_f32' in i.mn:
        return 8
    return 4


def need(p, c):
    n = 0
    pv = {x for x in p.w if x[0] in 'va' and not x.startswith('vcc')}
    ps = {x for x in p.w if x[0] == 's' or x.startswith('vcc')}
    if p.valu:
        if pv & c.r:
            if c.dpp:
                n = max(n, 2)
            if c.base in ('v_readlane_b32', 'v_readfirstlane_b32'):
                n = max(n, 1)
            if c.base.startswith('v_permlane'):
                n = max(n, 2)
            if c.mfma:
                n = max(n, 2)
            if p.trans and (c.valu or c.mfma) :
                n = max(n, 1)
        if p.dlop:
            if c.base == p.base:
                if pv & c.srcab:
                    n = max(n, 3)
                elif (pv & c.w) and not (pv & c.srcc):
                    n = max(n, 3)
            elif pv & (c.r | c.w):
                n = max(n, 3)
        if ps:
            if c.valu and (ps & c.r):
                n = max(n, 2)
            if ps & c.lanesel:
                n = max(n, 4)
            if c.vmem and (ps & c.r):
                n = max(n, 5)
            if c.base == 'v_div_fmas_f32' and (ps & {'vcc_lo', 'vcc_hi'}):
                n = max(n, 4)
            if c.salu and (ps & c.r):
                n = max(n, 1)
    if p.mfma:
        k = mfma_passes(p)
        tab_c = {4: 6, 8: 10}[k]
        tab_ab = {4: 8, 8: 12}[k]
        war = {4: 3, 8: 7}[k]
        if c.mfma:
            if p.w & c.srcab:
                n = max(n, tab_ab)
            if p.w & c.srcc:
                if c.srcc == p.w and c.mn == p.mn:
                    pass
                else:
                    n = max(n, tab_c)
            elif p.w & c.w:
                n = max(n, tab_c)
        else:
            if p.w & (c.r | c.w):
                n = max(n, tab_ab)
            if c.valu and (p.srcc & c.w):
                n = max(n, war)
    if p.vmem and len(p.store_data) >= 3 and (p.store_data & c.w):
        n = max(n, 2)
    if p.salu and 'm0' in p.w and (('lds' in c.mods.split()) or c.mn.startswith('global_load_lds')):
        n = max(n, 1)
    return n


class Asm:
    def __init__(self):
        self.lines = []
        self.hist = []
        self.vm = []
        self.nops = 0

    def raw(self, s):
        self.lines.append(s)

    def comment(self, s):
        self.lines.append('    ; ' + s)

    def label(self, name, flush=True):
        if flush:
            self.flush_hazards()
        self.lines.append(name + ':')

    def flush_hazards(self):
        worst = 0
        dist = 0
        for p in reversed(self.hist[-24:]):
            w = 0
            if p.mfma:
                w = {4: 8, 8: 12}[mfma_passes(p)]
            elif p.valu:
                w = 3 if p.dlop else 2
                if any(x[0] == 's' or x.startswith('vcc') for x in p.w):
                    w = 5
            elif p.vmem and len(p.store_data) >= 3:
                w = 2
            worst = max(worst, w - dist)
            dist += p.states
        if worst > 0:
            self._nop(worst)

    def _nop(self, n):
        while n > 0:
            k = min(n, 16)
            line = '    s_nop %d' % (k - 1)
            self.lines.append(line)
            self.hist.append(parse(line))
            self.nops += k
            n -= k

    def e(self, line, tag=None):
        c = parse(line)
        dist = 0
        pad = 0
        for p in reversed(self.hist[-24:]):
            n = need(p, c)
            if n - dist > pad:
                pad = n - dist
            dist += p.states
            if dist > 20:
                break
        if pad > 0:
            self._nop(pad)
        self.lines.append('    ' + line)
        self.hist.append(c)
        if c.vmem:
            self.vm.append(tag)
        return c

    def wait_vm(self, tag, extra=''):
        idx = [k for k, t in enumerate(self.vm) if t == tag]
        if not idx:
            if extra:
                self.e('s_waitcnt ' + extra)
            return
        k = idx[-1]
        n = len(self.vm) - 1 - k
        assert n <= 63
        self.e(('s_waitcnt vmcnt(%d) ' % n + extra).strip())
        self.vm = self.vm[k + 1:]

    def wait_vm_all(self):
        self.e('s_waitcnt vmcnt(0)')
        self.vm = []

    def text(self):
        return '\n'.join(self.lines) + '\n'
```

```python
import struct
import sys
import os
sys.path.insert(0, os.path.dirname(os.path.abspath(__file__)))
from asmlib import Asm

NAME = 'recurrent_scan__gqa_block_cached__mixer_token_mlp__decode'


def f2u(x):
    return struct.unpack('<I', struct.pack('<f', x))[0]


def hexf(x):
    return '0x%08x' % f2u(x)


def br4(j):
    return ((j & 1) << 3) | ((j & 2) << 1) | ((j & 4) >> 1) | ((j & 8) >> 3)


DEF = dict(
    H=4,
    ML_STEP=12,
    WO_START=0,
    WO_EVERY=2,
    GATE_PER=12,
    POLL_SLEEP=2,
    DEBUG=0,
)

LQ = 0
LQ_STRIDE = 528
LQB = 8448
LML = 8704
LG = 8832
LS = 13952
LDS_BYTES = LS + 16 * 2560

MB_STRIDE = 3072

S_W = 3
SRD_X, SRD_K, SRD_V, SRD_WQ, SRD_WO = 4, 8, 12, 16, 20
SRD_W1, SRD_B1, SRD_W2, SRD_B2, SRD_OUT, SRD_DBG, SRD_MB = 24, 28, 32, 36, 40, 44, 48
S_B, S_H, S_T0, S_T1 = 52, 53, 54, 55
S_MB1, S_MB0 = 56, 58
S_OFF, S_T2, S_T3, S_T4 = 60, 61, 62, 63
S_HV = 64
S_C1, S_LOG2E, S_SCALE, S_R640 = 90, 91, 92, 93
S_U0, S_U1, S_CNT, S_HI = 94, 95, 96, 97

V_L = 1
V_KV = 2
V_WOFF = 3
V_M = 4
V_Q = 8
V_ACC = 12
V_A = 16
V_S = 24
V_T = 28
V_R1 = 32
V_R2 = 34
V_R3 = 36
V_X = 38
V_Y = 39
V_W1A, V_W1B, V_B1A, V_B1B, V_W2P = 40, 41, 42, 43, 44
V_C0 = 45
V_XG = 46
V_DWR = 47
V_RDY = 48
V_F = 49
V_MW = 50
V_LW = 51
V_XQ = 52
V_TA = 53
V_TB = 54
V_TC = 55
V_KB = 56
V_W = 88


def srd(n):
    return 's[%d:%d]' % (n, n + 3)


def vr(n, k):
    return 'v[%d:%d]' % (n, n + k - 1)


def gen(**kw):
    P = dict(DEF)
    P.update(kw)
    H = P['H']
    a = Asm()
    e = a.e

    def bf16r(dst, src, tmp=None):
        e('v_cvt_pk_bf16_f32 v%d, v%d, v%d' % (dst, src, src))
        e('v_and_b32 v%d, 0xffff0000, v%d' % (dst, dst))

    def bf16r2(d0, d1, s0, s1, tmp):
        e('v_cvt_pk_bf16_f32 v%d, v%d, v%d' % (tmp, s0, s1))
        e('v_lshlrev_b32 v%d, 16, v%d' % (d0, tmp))
        e('v_and_b32 v%d, 0xffff0000, v%d' % (d1, tmp))

    def row_allreduce(op, regs):
        for sh in (8, 4, 2, 1):
            for r in regs:
                e('%s_dpp v%d, v%d, v%d row_ror:%d row_mask:0xf bank_mask:0xf' % (op, r, r, r, sh))

    def wave_reduce_to_sgpr(op, r, sdst):
        row_allreduce(op, [r])
        e('%s_dpp v%d, v%d, v%d row_bcast:15 row_mask:0xa bank_mask:0xf' % (op, r, r, r))
        e('%s_dpp v%d, v%d, v%d row_bcast:31 row_mask:0xc bank_mask:0xf' % (op, r, r, r))
        e('v_readlane_b32 s%d, v%d, 63' % (sdst, r))

    a.raw('; @launch grid=(256,1,1) block=(1024,1,1) lds=%d' % LDS_BYTES)
    a.raw('.amdgcn_target "amdgcn-amd-amdhsa--gfx950"')
    a.raw('.text')
    a.raw('.globl %s_kernel' % NAME)
    a.raw('.p2align 8')
    a.raw('.type %s_kernel,@function' % NAME)
    a.raw('%s_kernel:' % NAME)

    e('s_load_dwordx16 s[64:79], s[0:1], 0')
    e('s_load_dwordx8 s[80:87], s[0:1], 64')
    e('s_load_dwordx2 s[88:89], s[0:1], 96')
    e('s_cmp_ge_u32 s2, 256')
    e('s_cbranch_scc1 L_end')
    e('v_lshrrev_b32 v%d, 6, v0' % V_KV)
    e('v_and_b32 v%d, 63, v0' % V_L)
    e('v_readfirstlane_b32 s%d, v%d' % (S_W, V_KV))
    e('s_and_b32 s%d, s2, 7' % S_T0)
    e('s_lshr_b32 s%d, s2, 3' % S_T1)
    e('s_lshl_b32 s%d, s%d, 2' % (S_H, S_T0))
    e('s_and_b32 s%d, s%d, 3' % (S_T0, S_T1))
    e('s_or_b32 s%d, s%d, s%d' % (S_H, S_H, S_T0))
    e('s_lshr_b32 s%d, s%d, 2' % (S_B, S_T1))
    e('s_mul_i32 s%d, s%d, 1280' % (S_OFF, S_B))
    e('s_lshl_b32 s%d, s%d, 5' % (S_T2, S_B))
    e('s_add_u32 s%d, s%d, s%d' % (S_T2, S_T2, S_H))
    e('s_lshl_b32 s%d, s%d, 20' % (S_T2, S_T2))
    e('s_lshl_b32 s%d, s%d, 8' % (S_T3, S_H))
    e('s_mul_i32 s%d, s%d, 163840' % (S_T4, S_H))
    e('s_mul_i32 s%d, s%d, %d' % (S_U0, S_B, 32 * MB_STRIDE))
    for n, sz in ((SRD_X, 1280), (SRD_K, 1 << 20), (SRD_V, 1 << 20), (SRD_WO, 163840), (SRD_W1, 3456), (SRD_B1, 3456),
                  (SRD_W2, 3456), (SRD_B2, 2), (SRD_OUT, 1280), (SRD_DBG, 256), (SRD_MB, 32 * MB_STRIDE)):
        e('s_mov_b32 s%d, %d' % (n + 2, sz))
        e('s_mov_b32 s%d, 0x00020000' % (n + 3))
    e('s_sub_u32 s%d, %d, s%d' % (SRD_WQ + 2, 640 * 8192, S_T3))
    e('s_mov_b32 s%d, 0x00020000' % (SRD_WQ + 3))
    G, C = V_TA, V_TB
    e('v_lshrrev_b32 v%d, 4, v%d' % (G, V_L))
    e('v_and_b32 v%d, 15, v%d' % (C, V_L))
    e('v_lshlrev_b32 v%d, 2, v%d' % (V_X, V_L))
    e('s_mul_i32 s%d, s%d, 80' % (S_T0, S_W))
    e('v_lshlrev_b32 v%d, 2, v%d' % (V_Y, C))
    e('v_add_u32 v%d, v%d, v%d' % (V_Y, V_Y, G))
    e('v_lshlrev_b32 v%d, 1, v%d' % (V_Y, V_Y))
    e('v_lshlrev_b32 v%d, 13, v%d' % (V_WOFF, G))
    e('v_lshl_add_u32 v%d, v%d, 4, v%d' % (V_WOFF, C, V_WOFF))
    e('s_mul_i32 s%d, s%d, %d' % (S_T1, S_W, H * 1024))
    e('v_lshlrev_b32 v%d, 4, v%d' % (V_KV, V_L))
    e('v_lshlrev_b32 v%d, 1, v%d' % (V_TC, V_L))
    e('s_waitcnt lgkmcnt(0)')

    def base(n, p, off=None):
        if off is None:
            e('s_mov_b64 s[%d:%d], s[%d:%d]' % (n, n + 1, p, p + 1))
        else:
            e('s_add_u32 s%d, s%d, s%d' % (n, p, off))
            e('s_addc_u32 s%d, s%d, 0' % (n + 1, p + 1))

    XR = V_A
    XF = V_A + 5
    base(SRD_X, 64, S_OFF)
    base(SRD_MB, 88, S_U0)
    for i in range(5):
        e('buffer_load_dword v%d, v%d, %s, 0 offen offset:%d' % (XR + i, V_X, srd(SRD_X), 256 * i), tag='x')
    e('buffer_load_ushort v%d, v%d, %s, s%d offen' % (V_XQ, V_Y, srd(SRD_X), S_T0), tag='x')
    e('s_mul_i32 s%d, s%d, 40' % (S_T0, S_H))
    base(SRD_WQ, 70, S_T3)
    e('buffer_load_ushort v%d, v%d, %s, s%d offen' % (V_XG, V_TC, srd(SRD_X), S_T0), tag='x')
    e('s_mul_i32 s%d, s%d, %d' % (S_U1, S_H, MB_STRIDE))
    e('s_cmp_lg_u32 s%d, 15' % S_W)
    e('s_cbranch_scc1 L_noclear')
    for i in range(4):
        e('v_mov_b32 v%d, -1' % (V_ACC + i))
    saved = list(a.vm)
    for i in range(3):
        e('buffer_store_dwordx4 %s, v%d, %s, s%d offen offset:%d sc1' % (vr(V_ACC, 4), V_KV, srd(SRD_MB), S_U1, 1024 * i))
    a.vm = saved
    a.label('L_noclear')
    e('s_mul_i32 s%d, s%d, %d' % (S_T0, S_W, 40 * 8192))
    for i in range(10):
        e('buffer_load_dwordx4 %s, v%d, %s, s%d offen' % (vr(V_W + 4 * i, 4), V_WOFF, srd(SRD_WQ), S_T0), tag='wq%d' % i)
        if i < 9:
            e('s_add_u32 s%d, s%d, %d' % (S_T0, S_T0, 4 * 8192))
    base(SRD_K, 66, S_T2)
    e('v_add_u32 v%d, s%d, v%d' % (V_KV, S_T1, V_KV))

    state = {'soff': None}

    def issue_stream(n):
        if n >= 128:
            return
        t, m = divmod(n, 64)
        r, i = divmod(m, H)
        so = r * 16 * H * 1024 + (i // 4) * 4096
        if state['soff'] != so:
            e('s_mov_b32 s%d, %d' % (S_OFF, so))
            state['soff'] = so
        e('buffer_load_dwordx4 %s, v%d, %s, s%d offen offset:%d nt' %
          (vr(V_KB + 4 * (n % 8), 4), V_KV, srd(SRD_V if t else SRD_K), S_OFF, (i % 4) * 1024), tag='kv%d' % n)

    base(SRD_OUT, 84, S_OFF)
    for n in range(8):
        issue_stream(n)
    base(SRD_W1, 76)
    base(SRD_B1, 78)
    base(SRD_W2, 80)
    e('s_lshl_b32 s%d, s%d, 7' % (S_T0, S_W))
    e('buffer_load_ushort v%d, v%d, %s, s%d offen' % (V_W1A, V_TC, srd(SRD_W1), S_T0), tag='gp')
    e('buffer_load_ushort v%d, v%d, %s, s%d offen offset:2048' % (V_W1B, V_TC, srd(SRD_W1), S_T0), tag='gp')
    e('buffer_load_ushort v%d, v%d, %s, s%d offen' % (V_B1A, V_TC, srd(SRD_B1), S_T0), tag='gp')
    e('buffer_load_ushort v%d, v%d, %s, s%d offen offset:2048' % (V_B1B, V_TC, srd(SRD_B1), S_T0), tag='gp')
    e('buffer_load_ushort v%d, v%d, %s, s%d offen' % (V_W2P, V_TC, srd(SRD_W2), S_T0), tag='gp')
    e('buffer_load_ushort v%d, v%d, %s, s%d offen offset:2048' % (V_C0, V_TC, srd(SRD_W2), S_T0), tag='gp')
    base(SRD_V, 68, S_T2)
    base(SRD_WO, 72, S_T4)
    base(SRD_B2, 82)
    base(SRD_DBG, 86)
    kbeta = 0.7978845608028654
    kkappa = 0.044715
    log2e = 1.4426950408889634
    c0 = -2.0 * kbeta * log2e
    c1 = c0 * kkappa
    e('s_mov_b32 s%d, %s' % (S_C1, hexf(c1)))
    e('s_mov_b32 s%d, %s' % (S_LOG2E, hexf(log2e)))
    e('s_mov_b32 s%d, %s' % (S_SCALE, hexf(128 ** -0.5)))
    e('s_mov_b32 s%d, %s' % (S_R640, hexf(1.0 / 640)))
    e('s_mov_b32 s%d, 0xcccccccc' % S_MB1)
    e('s_mov_b32 s%d, 0xcccccccc' % (S_MB1 + 1))
    e('s_mov_b32 s%d, 0xaaaaaaaa' % S_MB0)
    e('s_mov_b32 s%d, 0xaaaaaaaa' % (S_MB0 + 1))
    e('s_mov_b32 s%d, 0xffff0000' % S_HI)
    e('v_mov_b32 v%d, 0xffff' % V_X)
    e('v_mov_b32 v%d, s%d' % (V_Y, S_HI))
    e('v_cndmask_b32 v%d, v%d, v%d, s[%d:%d]' % (V_X, V_X, V_Y, S_MB0, S_MB0 + 1))
    e('v_lshrrev_b32 v%d, 1, v%d' % (V_Y, C))
    for r in range(4):
        e('v_cmp_eq_u32 vcc, %d, v%d' % (r, V_Y))
        e('v_cndmask_b32 v%d, 0, v%d, vcc' % (V_M + r, V_X))
    e('v_lshlrev_b32 v%d, 5, v%d' % (V_DWR, C))
    e('v_lshl_add_u32 v%d, v%d, 4, v%d' % (V_DWR, G, V_DWR))
    e('v_mul_u32_u24 v%d, 1280, v%d' % (V_F, G))
    e('v_lshl_add_u32 v%d, v%d, 4, v%d' % (V_F, C, V_F))

    a.wait_vm('x')
    for i in range(5):
        e('v_lshlrev_b32 v%d, 16, v%d' % (XF + 2 * i, XR + i))
        e('v_and_b32 v%d, 0xffff0000, v%d' % (XF + 2 * i + 1, XR + i))
    e('v_lshlrev_b32 v%d, 16, v%d' % (V_XQ, V_XQ))
    e('v_lshlrev_b32 v%d, 16, v%d' % (V_XG, V_XG))

    T0, T1, T2 = V_R1, V_R1 + 1, V_R2
    MEAN, SD, RINV = V_R2 + 1, V_R3, V_R3 + 1

    def ln_stats(src):
        e('v_add_f32 v%d, v%d, v%d' % (T0, src, src + 1))
        e('v_add_f32 v%d, v%d, v%d' % (T1, src + 2, src + 3))
        for i in range(4, 10, 2):
            e('v_add_f32 v%d, v%d, v%d' % (T0, T0, src + i))
            e('v_add_f32 v%d, v%d, v%d' % (T1, T1, src + i + 1))
        e('v_add_f32 v%d, v%d, v%d' % (T0, T0, T1))
        wave_reduce_to_sgpr('v_add_f32', T0, S_T0)
        e('v_mov_b32 v%d, s%d' % (MEAN, S_R640))
        e('v_mul_f32 v%d, s%d, v%d' % (MEAN, S_T0, MEAN))
        e('v_sub_f32 v%d, v%d, v%d' % (T2, src, MEAN))
        e('v_mul_f32 v%d, v%d, v%d' % (T0, T2, T2))
        e('v_sub_f32 v%d, v%d, v%d' % (T2, src + 1, MEAN))
        e('v_mul_f32 v%d, v%d, v%d' % (T1, T2, T2))
        for i in range(2, 10):
            e('v_sub_f32 v%d, v%d, v%d' % (T2, src + i, MEAN))
            e('v_fmac_f32 v%d, v%d, v%d' % (T0 if i % 2 == 0 else T1, T2, T2))
        e('v_add_f32 v%d, v%d, v%d' % (T0, T0, T1))
        wave_reduce_to_sgpr('v_add_f32', T0, S_T0)
        e('v_mov_b32 v%d, s%d' % (SD, S_R640))
        e('v_mul_f32 v%d, s%d, v%d' % (SD, S_T0, SD))
        bf16r2(MEAN, SD, MEAN, SD, T0)
        e('v_add_f32 v%d, %s, v%d' % (SD, hexf(1e-5), SD))
        bf16r(SD, SD)
        e('v_sqrt_f32 v%d, v%d' % (SD, SD))
        bf16r(SD, SD)
        e('v_rcp_f32 v%d, v%d' % (RINV, SD))

    def ln_apply_ops(pairs, tq0, tq1, tp):
        ops = []
        for (r0, r1) in pairs:
            ops.append('v_sub_f32 v%d, v%d, v%d' % (r0, r0, MEAN))
            ops.append('v_sub_f32 v%d, v%d, v%d' % (r1, r1, MEAN))
            ops.append('v_cvt_pk_bf16_f32 v%d, v%d, v%d' % (tp, r0, r1))
            ops.append('v_lshlrev_b32 v%d, 16, v%d' % (r0, tp))
            ops.append('v_and_b32 v%d, 0xffff0000, v%d' % (r1, tp))
            ops.append('v_mul_f32 v%d, v%d, v%d' % (tq0, r0, RINV))
            ops.append('v_mul_f32 v%d, v%d, v%d' % (tq1, r1, RINV))
            ops.append('v_fma_f32 v%d, -v%d, v%d, v%d' % (r0, tq0, SD, r0))
            ops.append('v_fma_f32 v%d, -v%d, v%d, v%d' % (r1, tq1, SD, r1))
            ops.append('v_fmac_f32 v%d, v%d, v%d' % (tq0, r0, RINV))
            ops.append('v_fmac_f32 v%d, v%d, v%d' % (tq1, r1, RINV))
            ops.append('v_cvt_pk_bf16_f32 v%d, v%d, v%d' % (tp, tq0, tq1))
            ops.append('v_lshlrev_b32 v%d, 16, v%d' % (r0, tp))
            ops.append('v_and_b32 v%d, 0xffff0000, v%d' % (r1, tp))
        return ops

    ln_stats(XF)
    for op in ln_apply_ops([(V_XQ, V_XG)], T0, T1, T2):
        e(op)
    e('v_cvt_pk_bf16_f32 v%d, v%d, v%d' % (V_XQ, V_XQ, V_XQ))
    for op in ln_apply_ops([(XF + 2 * i, XF + 2 * i + 1) for i in range(5)], T0, T1, T2):
        e(op)
    ln_stats(XF)
    for op in ln_apply_ops([(V_XG, XF)], T0, T1, T2):
        e(op)
    for t in range(20):
        e('v_readlane_b32 s%d, v%d, %d' % (S_HV + t, V_XG, t))

    def build_A(aset, preg, lane):
        for r in range(4):
            if lane is None:
                e('v_and_b32 v%d, v%d, v%d' % (V_A + 4 * aset + r, preg, V_M + r))
            else:
                e('v_and_b32_dpp v%d, v%d, v%d row_newbcast:%d row_mask:0xf bank_mask:0xf' %
                  (V_A + 4 * aset + r, preg, V_M + r, lane))

    build_A(0, V_XQ, 0)
    for i in range(10):
        if i + 1 < 10:
            build_A((i + 1) & 1, V_XQ, i + 1)
        a.wait_vm('wq%d' % i)
        e('v_mfma_f32_16x16x32_bf16 %s, %s, %s, %s' % (vr(V_ACC, 4), vr(V_A + 4 * (i & 1), 4), vr(V_W + 4 * i, 4),
                                                   '0' if i == 0 else vr(V_ACC, 4)))
    e('s_mul_i32 s%d, s%d, %d' % (S_T0, S_W, LQ_STRIDE))
    e('v_add_u32 v%d, s%d, v%d' % (V_TA, S_T0, V_DWR))
    e('v_and_b32 v%d, 15, v%d' % (V_TB, V_L))
    e('v_mul_u32_u24 v%d, %d, v%d' % (V_TB, LQ_STRIDE, V_TB))
    e('v_lshrrev_b32 v%d, 4, v%d' % (V_TC, V_L))
    e('s_lshl_b32 s%d, s%d, 5' % (S_T0, S_W))
    e('v_add_u32 v%d, s%d, v%d' % (V_TB, S_T0, V_TB))
    e('v_lshl_add_u32 v%d, v%d, 3, v%d' % (V_X, V_TC, V_TB))
    e('s_mov_b32 exec_hi, 0')
    e('ds_write_b128 v%d, %s offset:%d' % (V_TA, vr(V_ACC, 4), LQ))
    e('s_mov_b32 exec_hi, -1')
    e('s_lshl_b32 s%d, s%d, 4' % (S_T0, S_W))
    e('v_lshlrev_b32 v%d, 2, v%d' % (V_Y, V_TC))
    e('v_add_u32 v%d, s%d, v%d' % (V_Y, S_T0, V_Y))
    e('s_waitcnt lgkmcnt(0)')
    e('s_barrier')
    e('ds_read_b64 %s, v%d offset:%d' % (vr(V_R1, 2), V_X, LQ))
    e('v_and_b32 v%d, 15, v%d' % (V_X, V_L))
    e('v_lshlrev_b32 v%d, 4, v%d' % (V_X, V_X))
    e('s_waitcnt lgkmcnt(0)')
    row_allreduce('v_add_f32', [V_R1, V_R1 + 1])
    e('v_cvt_pk_bf16_f32 v%d, v%d, v%d' % (V_R1, V_R1, V_R1 + 1))
    e('ds_write_b32 v%d, v%d offset:%d' % (V_Y, V_R1, LQB))
    e('s_waitcnt lgkmcnt(0)')
    e('s_barrier')
    e('ds_read_b128 %s, v%d offset:%d' % (vr(V_Q, 4), V_X, LQB))
    e('v_mov_b32 v%d, v%d' % (V_WOFF, V_F))
    e('v_lshl_add_u32 v%d, v%d, 2, v%d' % (V_XQ, V_TC, V_TB))
    e('s_cmp_lg_u32 s%d, 15' % S_W)
    e('s_cbranch_scc1 L_noready')
    e('s_waitcnt vmcnt(0)')
    e('s_lshl_b32 s%d, s%d, 5' % (S_T0, S_B))
    e('v_mov_b32 v%d, 1' % V_R2)
    e('v_mov_b32 v%d, 0' % (V_R2 + 1))
    e('s_mov_b64 exec, 1')
    saved = list(a.vm)
    e('buffer_atomic_add v%d, v%d, %s, s%d offen sc1' % (V_R2, V_R2 + 1, srd(SRD_DBG), S_T0))
    a.vm = saved
    e('s_mov_b64 exec, -1')
    a.label('L_noready')

    GT = V_W
    ga, gb, gp, gx2a, gx2b, gta, gtb = GT, GT + 1, GT + 2, GT + 3, GT + 4, GT + 5, GT + 6
    gy = [GT + 8, GT + 9]
    gr1 = [GT + 10, GT + 11]
    gr2 = [GT + 12, GT + 13]
    gr3 = [GT + 14, GT + 15]
    gG0, gG1, gtx, gty, gad0, gad1 = GT + 16, GT + 17, GT + 18, GT + 19, GT + 20, GT + 21
    gops = []
    gops.append(('wait', 'gp'))
    for r in (V_W1A, V_W1B, V_B1A, V_B1B):
        gops.append('v_lshlrev_b32 v%d, 16, v%d' % (r, r))
    gops.append('v_lshl_or_b32 v%d, v%d, 16, v%d' % (V_W2P, V_C0, V_W2P))
    gops.append('v_mov_b32 v%d, %s' % (V_C0, hexf(c0)))

    def merge_ops(level, dst, x0, x1, tx, ty):
        if level == 1:
            return ['v_add_f32_dpp v%d, v%d, v%d row_mirror row_mask:0xf bank_mask:0x3' % (dst, x0, x0),
                    'v_add_f32_dpp v%d, v%d, v%d row_mirror row_mask:0xf bank_mask:0xc' % (dst, x1, x1)]
        if level == 2:
            return ['v_add_f32_dpp v%d, v%d, v%d row_half_mirror row_mask:0xf bank_mask:0x5' % (dst, x0, x0),
                    'v_add_f32_dpp v%d, v%d, v%d row_half_mirror row_mask:0xf bank_mask:0xa' % (dst, x1, x1)]
        m = S_MB1 if level == 3 else S_MB0
        qp = '[2,3,0,1]' if level == 3 else '[1,0,3,2]'
        return ['v_cndmask_b32 v%d, v%d, v%d, s[%d:%d]' % (tx, x0, x1, m, m + 1),
                'v_cndmask_b32 v%d, v%d, v%d, s[%d:%d]' % (ty, x1, x0, m, m + 1),
                'v_add_f32_dpp v%d, v%d, v%d quad_perm:%s row_mask:0xf bank_mask:0xf' % (dst, ty, tx, qp)]

    pend = []
    for t in range(20):
        s = S_HV + t
        col = [
            'v_mul_f32 v%d, s%d, v%d' % (ga, s, V_W1A),
            'v_mul_f32 v%d, s%d, v%d' % (gb, s, V_W1B),
            'v_cvt_pk_bf16_f32 v%d, v%d, v%d' % (gp, ga, gb),
            'v_lshlrev_b32 v%d, 16, v%d' % (ga, gp),
            'v_and_b32 v%d, 0xffff0000, v%d' % (gb, gp),
            'v_add_f32 v%d, v%d, v%d' % (ga, ga, V_B1A),
            'v_add_f32 v%d, v%d, v%d' % (gb, gb, V_B1B),
            'v_cvt_pk_bf16_f32 v%d, v%d, v%d' % (gp, ga, gb),
            'v_lshlrev_b32 v%d, 16, v%d' % (ga, gp),
            'v_and_b32 v%d, 0xffff0000, v%d' % (gb, gp),
            'v_mul_f32 v%d, v%d, v%d' % (gx2a, ga, ga),
            'v_mul_f32 v%d, v%d, v%d' % (gx2b, gb, gb),
            'v_fma_f32 v%d, v%d, s%d, v%d' % (gx2a, gx2a, S_C1, V_C0),
            'v_fma_f32 v%d, v%d, s%d, v%d' % (gx2b, gx2b, S_C1, V_C0),
            'v_mul_f32 v%d, v%d, v%d' % (gx2a, gx2a, ga),
            'v_mul_f32 v%d, v%d, v%d' % (gx2b, gx2b, gb),
            'v_exp_f32 v%d, v%d' % (gx2a, gx2a),
            'v_exp_f32 v%d, v%d' % (gx2b, gx2b),
        ] + pend + [
            'v_add_f32 v%d, 1.0, v%d' % (gx2a, gx2a),
            'v_add_f32 v%d, 1.0, v%d' % (gx2b, gx2b),
            'v_rcp_f32 v%d, v%d' % (gx2a, gx2a),
            'v_rcp_f32 v%d, v%d' % (gx2b, gx2b),
            'v_mul_f32 v%d, v%d, v%d' % (ga, ga, gx2a),
            'v_mul_f32 v%d, v%d, v%d' % (gb, gb, gx2b),
            'v_cvt_pk_bf16_f32 v%d, v%d, v%d' % (gp, ga, gb),
            'v_dot2_f32_bf16 v%d, v%d, v%d, 0' % (gy[t & 1], gp, V_W2P),
        ]
        gops += col
        pend = []
        if t & 1:
            k1 = (t >> 1) & 1
            pend += merge_ops(1, gr1[k1], gy[0], gy[1], gtx, gty)
            if t & 2:
                k2 = (t >> 2) & 1
                if t < 16:
                    pend += merge_ops(2, gr2[k2], gr1[0], gr1[1], gtx, gty)
                    if t & 4:
                        k3 = (t >> 3) & 1
                        pend += merge_ops(3, gr3[k3], gr2[0], gr2[1], gtx, gty)
                        if t & 8:
                            pend += merge_ops(4, gG0, gr3[0], gr3[1], gtx, gty)
                else:
                    pend += merge_ops(2, gG1, gr1[0], gr1[1], gtx, gty)
                    pend += ['v_add_f32_dpp v%d, v%d, v%d quad_perm:[2,3,0,1] row_mask:0xf bank_mask:0xf' % (gG1, gG1, gG1),
                             'v_add_f32_dpp v%d, v%d, v%d quad_perm:[1,0,3,2] row_mask:0xf bank_mask:0xf' % (gG1, gG1, gG1)]
    gops += pend
    gops += [
        'v_bfrev_b32 v%d, v%d' % (gad0, V_L),
        'v_lshrrev_b32 v%d, 28, v%d' % (gad0, gad0),
        'v_and_b32 v%d, 3, v%d' % (gad1, gad0),
        'v_lshrrev_b32 v%d, 4, v%d' % (gtx, V_L),
        'v_mul_u32_u24 v%d, 80, v%d' % (gtx, gtx),
        ('s', 's_mul_i32 s%d, s%d, 320' % (S_T0, S_W)),
        'v_add_u32 v%d, s%d, v%d' % (gtx, S_T0, gtx),
        'v_lshl_add_u32 v%d, v%d, 2, v%d' % (gad0, gad0, gtx),
        'v_lshl_add_u32 v%d, v%d, 2, v%d' % (gad1, gad1, gtx),
        'ds_write_b32 v%d, v%d offset:%d' % (gad0, gG0, LG),
        'ds_write_b32 v%d, v%d offset:%d' % (gad1, gG1, LG + 64),
    ]

    def pop_gate(k):
        for _ in range(k):
            if not gops:
                return
            op = gops.pop(0)
            if isinstance(op, tuple):
                if op[0] == 'wait':
                    a.wait_vm(op[1])
                else:
                    e(op[1])
            else:
                e(op)

    e('s_waitcnt lgkmcnt(0)')
    kpend = []
    for n in range(64):
        a.wait_vm('kv%d' % n)
        kb = V_KB + 4 * (n % 8)
        T = V_T + (n & 3)
        for k in range(4):
            e('v_dot2_f32_bf16 v%d, v%d, v%d, %s' % (T, kb + k, V_Q + k, '0' if k == 0 else 'v%d' % T))
        issue_stream(n + 8)
        for op in kpend:
            e(op)
        kpend = []
        j = n & 15
        if j & 1:
            k1 = (j >> 1) & 1
            kpend += merge_ops(1, V_R1 + k1, V_T + ((n - 1) & 3), V_T + (n & 3), V_X, V_Y)
            if j & 2:
                k2 = (j >> 2) & 1
                kpend += merge_ops(2, V_R2 + k2, V_R1, V_R1 + 1, V_X, V_Y)
                if j & 4:
                    k3 = (j >> 3) & 1
                    kpend += merge_ops(3, V_R3 + k3, V_R2, V_R2 + 1, V_X, V_Y)
                    if j & 8:
                        kpend += merge_ops(4, V_S + (n >> 4), V_R3, V_R3 + 1, V_X, V_Y)
        if n >= 2:
            pop_gate(P['GATE_PER'])
    for op in kpend:
        e(op)
    pop_gate(10000)

    S = V_S
    bf16r2(S, S + 1, S, S + 1, V_X)
    bf16r2(S + 2, S + 3, S + 2, S + 3, V_Y)
    for k in range(4):
        e('v_mul_f32 v%d, s%d, v%d' % (S + k, S_SCALE, S + k))
    bf16r2(S, S + 1, S, S + 1, V_X)
    bf16r2(S + 2, S + 3, S + 2, S + 3, V_Y)
    e('v_max_f32 v%d, v%d, v%d' % (V_X, S, S + 1))
    e('v_max3_f32 v%d, v%d, v%d, v%d' % (V_X, V_X, S + 2, S + 3))
    wave_reduce_to_sgpr('v_max_f32', V_X, S_T0)
    for k in range(4):
        e('v_subrev_f32 v%d, s%d, v%d' % (S + k, S_T0, S + k))
    e('v_mov_b32 v%d, s%d' % (V_MW, S_T0))
    for k in range(4):
        e('v_mul_f32 v%d, s%d, v%d' % (S + k, S_LOG2E, S + k))
    for k in range(4):
        e('v_exp_f32 v%d, v%d' % (S + k, S + k))
    e('v_add_f32 v%d, v%d, v%d' % (V_X, S, S + 1))
    e('v_add_f32 v%d, v%d, v%d' % (V_Y, S + 2, S + 3))
    for k in range(4):
        e('v_cvt_pk_bf16_f32 v%d, v%d, v%d' % (S + k, S + k, S + k))
    e('v_add_f32 v%d, v%d, v%d' % (V_X, V_X, V_Y))
    build_A(0, S, br4(0))
    wave_reduce_to_sgpr('v_add_f32', V_X, S_T1)
    e('s_lshl_b32 s%d, s%d, 3' % (S_T0, S_W))
    e('v_mov_b32 v%d, s%d' % (V_LW, S_T1))
    e('v_mov_b32 v%d, s%d' % (V_X, S_T0))
    e('s_mov_b64 exec, 1')
    e('ds_write_b64 v%d, %s offset:%d' % (V_X, vr(V_MW, 2), LML))
    e('s_mov_b64 exec, -1')
    e('s_lshl_b32 s%d, s%d, 5' % (S_T0, S_B))
    e('v_mov_b32 v%d, 0' % V_Y)
    e('buffer_load_dword v%d, v%d, %s, s%d offen sc1' % (V_RDY, V_Y, srd(SRD_DBG), S_T0), tag='rdy')

    e('s_mul_i32 s%d, s%d, %d' % (S_T4, S_W, 8 * 1280))
    wo_next = [0]

    def issue_wo():
        i = wo_next[0]
        if i >= 10:
            return
        qd, seg = divmod(i, 5)
        if i == 5:
            e('s_add_u32 s%d, s%d, %d' % (S_T4, S_T4, 4 * 1280))
        e('buffer_load_dwordx4 %s, v%d, %s, s%d offen offset:%d' %
          (vr(V_W + 4 * i, 4), V_WOFF, srd(SRD_WO), S_T4, seg * 256), tag='wo%d' % i)
        wo_next[0] += 1

    for m in range(64):
        n = 64 + m
        a.wait_vm('kv%d' % n)
        vb = V_KB + 4 * (n % 8)
        e('v_mfma_f32_16x16x32_bf16 %s, %s, %s, %s' % (vr(V_ACC, 4), vr(V_A + 4 * (m & 1), 4), vr(vb, 4),
                                                   '0' if m == 0 else vr(V_ACC, 4)))
        if m + 1 < 64:
            build_A((m + 1) & 1, S + ((m + 1) >> 4), br4((m + 1) & 15))
        issue_stream(n + 8)
        if m >= P['WO_START'] and (m - P['WO_START']) % P['WO_EVERY'] == 0:
            issue_wo()
        if m == P['ML_STEP']:
            e('v_and_b32 v%d, 15, v%d' % (V_X, V_L))
            e('v_lshlrev_b32 v%d, 3, v%d' % (V_X, V_X))
            e('s_waitcnt lgkmcnt(0)')
            e('s_barrier')
            e('ds_read_b64 %s, v%d offset:%d' % (vr(V_R1, 2), V_X, LML))
            e('s_waitcnt lgkmcnt(0)')
            e('v_mov_b32 v%d, v%d' % (V_R2, V_R1))
            row_allreduce('v_max_f32', [V_R2])
            e('v_sub_f32 v%d, v%d, v%d' % (V_R1, V_R1, V_R2))
            e('v_sub_f32 v%d, v%d, v%d' % (V_F, V_MW, V_R2))
            e('v_mul_f32 v%d, s%d, v%d' % (V_R1, S_LOG2E, V_R1))
            e('v_mul_f32 v%d, s%d, v%d' % (V_F, S_LOG2E, V_F))
            e('v_exp_f32 v%d, v%d' % (V_R1, V_R1))
            e('v_exp_f32 v%d, v%d' % (V_F, V_F))
            e('v_mul_f32 v%d, v%d, v%d' % (V_R1, V_R1, V_R1 + 1))
            row_allreduce('v_add_f32', [V_R1])
            e('v_rcp_f32 v%d, v%d' % (V_R1, V_R1))
            e('v_mul_f32 v%d, v%d, v%d' % (V_F, V_F, V_R1))
        if m == 40:
            e('s_mul_i32 s%d, s%d, 2560' % (S_T0, S_W))
            e('v_add_u32 v%d, s%d, v%d' % (V_TB, S_T0, V_DWR))
            e('v_lshrrev_b32 v%d, 4, v%d' % (V_R3, V_L))
            e('v_and_b32 v%d, 15, v%d' % (V_R3 + 1, V_L))
            e('s_lshl_b32 s%d, s%d, 4' % (S_T0, S_W))
            e('v_add_u32 v%d, s%d, v%d' % (V_R3 + 1, S_T0, V_R3 + 1))
            e('v_mul_u32_u24 v%d, %d, v%d' % (V_TC, 4 * 2560, V_R3))
            e('v_lshl_add_u32 v%d, v%d, 4, v%d' % (V_TC, V_R3 + 1, V_TC))
            e('v_mul_u32_u24 v%d, 52429, v%d' % (V_XG, V_R3 + 1))
            e('v_lshrrev_b32 v%d, 18, v%d' % (V_XG, V_XG))
            e('v_mul_u32_u24 v%d, %d, v%d' % (V_XG, MB_STRIDE - 80, V_XG))
            e('v_lshl_add_u32 v%d, v%d, 4, v%d' % (V_XG, V_R3 + 1, V_XG))
            e('v_lshrrev_b32 v%d, 1, v%d' % (V_R3 + 1, V_R3))
            e('v_and_b32 v%d, 1, v%d' % (V_R3, V_R3))
            e('v_lshl_add_u32 v%d, v%d, 2, v%d' % (V_XG, V_R3 + 1, V_XG))
            e('v_lshl_add_u32 v%d, v%d, 3, v%d' % (V_XG, V_R3, V_XG))
            e('s_mul_i32 s%d, s%d, 80' % (S_U0, S_H))
    while wo_next[0] < 10:
        issue_wo()

    for k in range(4):
        e('v_mul_f32 v%d, v%d, v%d' % (V_ACC + k, V_ACC + k, V_F))
    e('s_mov_b32 exec_hi, 0')
    e('ds_write_b128 v%d, %s offset:%d' % (V_TA, vr(V_ACC, 4), LQ))
    e('s_mov_b32 exec_hi, -1')
    e('s_waitcnt lgkmcnt(0)')
    e('s_barrier')
    e('ds_read2_b32 %s, v%d offset0:%d offset1:%d' % (vr(V_R1, 2), V_XQ, LQ // 4, LQ // 4 + 4))
    e('s_waitcnt lgkmcnt(0)')
    row_allreduce('v_add_f32', [V_R1, V_R1 + 1])
    e('v_cvt_pk_bf16_f32 v%d, v%d, v%d' % (V_R1, V_R1, V_R1))
    e('v_cvt_pk_bf16_f32 v%d, v%d, v%d' % (V_R1 + 1, V_R1 + 1, V_R1 + 1))
    build_A(0, V_R1, None)
    build_A(1, V_R1 + 1, None)
    a.wait_vm('wo9')
    SA = V_KB
    for seg in range(5):
        e('v_mfma_f32_16x16x32_bf16 %s, %s, %s, 0' % (vr(SA + 4 * seg, 4), vr(V_A, 4), vr(V_W + 4 * seg, 4)))
    for seg in range(5):
        e('v_mfma_f32_16x16x32_bf16 %s, %s, %s, %s' % (vr(SA + 4 * seg, 4), vr(V_A + 4, 4), vr(V_W + 20 + 4 * seg, 4),
                                                   vr(SA + 4 * seg, 4)))
    e('s_mov_b32 exec_hi, 0')
    for seg in range(5):
        e('ds_write_b128 v%d, %s offset:%d' % (V_TB, vr(SA + 4 * seg, 4), LS + seg * 512))
    e('s_mov_b32 exec_hi, -1')
    e('v_readfirstlane_b32 s%d, v%d' % (S_T0, V_RDY))
    e('s_waitcnt lgkmcnt(0)')
    e('s_barrier')
    e('s_cmp_eq_u32 s%d, 15' % S_W)
    e('s_cbranch_scc1 L_final')
    e('s_cmp_ge_u32 s%d, 10' % S_W)
    e('s_cbranch_scc1 L_end')
    RB = V_W
    for k in range(4):
        e('ds_read_b128 %s, v%d offset:%d' % (vr(RB + 4 * k, 4), V_TC, LS + k * 2560))
    e('s_mov_b32 s%d, 0' % S_CNT)
    a.label('L_rdy')
    e('s_cmp_ge_u32 s%d, 32' % S_T0)
    e('s_cbranch_scc1 L_rdy_ok')
    e('s_add_u32 s%d, s%d, 1' % (S_CNT, S_CNT))
    e('s_cmp_ge_u32 s%d, 0x4000' % S_CNT)
    e('s_cbranch_scc1 L_rdy_ok')
    e('s_sleep 8')
    e('s_lshl_b32 s%d, s%d, 5' % (S_T1, S_B))
    e('v_mov_b32 v%d, 0' % V_Y)
    e('buffer_load_dword v%d, v%d, %s, s%d offen sc1' % (V_RDY, V_Y, srd(SRD_DBG), S_T1))
    e('s_waitcnt vmcnt(0)')
    e('v_readfirstlane_b32 s%d, v%d' % (S_T0, V_RDY))
    e('s_branch L_rdy')
    a.label('L_rdy_ok')
    e('s_waitcnt lgkmcnt(2)')
    for k in range(4):
        e('v_add_f32 v%d, v%d, v%d' % (RB + k, RB + k, RB + 4 + k))
    e('s_waitcnt lgkmcnt(0)')
    for k in range(4):
        e('v_add_f32 v%d, v%d, v%d' % (RB + 8 + k, RB + 8 + k, RB + 12 + k))
    for k in range(4):
        e('v_add_f32 v%d, v%d, v%d' % (RB + k, RB + k, RB + 8 + k))
    e('v_permlane32_swap_b32 v%d, v%d' % (RB, RB + 1))
    e('v_permlane32_swap_b32 v%d, v%d' % (RB + 2, RB + 3))
    e('v_add_f32 v%d, v%d, v%d' % (RB, RB, RB + 1))
    e('v_add_f32 v%d, v%d, v%d' % (RB + 2, RB + 2, RB + 3))
    e('v_permlane16_swap_b32 v%d, v%d' % (RB, RB + 2))
    e('v_add_f32 v%d, v%d, v%d' % (RB, RB, RB + 2))
    e('v_min_u32 v%d, -2, v%d' % (RB, RB))
    e('buffer_store_dword v%d, v%d, %s, s%d offen sc1' % (RB, V_XG, srd(SRD_MB), S_U0))
    e('s_endpgm')

    a.label('L_final')
    a.vm = []
    e('s_mov_b32 exec_hi, 0xff')
    HG, QQ, MBA, GA, OA = V_A, V_A + 1, V_A + 2, V_A + 3, V_A + 4
    e('v_and_b32 v%d, 7, v%d' % (HG, V_L))
    e('v_lshrrev_b32 v%d, 3, v%d' % (QQ, V_L))
    e('v_mul_u32_u24 v%d, 320, v%d' % (MBA, HG))
    e('v_lshl_add_u32 v%d, v%d, 4, v%d' % (MBA, QQ, MBA))
    PB = V_KB

    def poll_loads():
        for i in range(4):
            e('buffer_load_dwordx4 %s, v%d, %s, s%d offen offset:%d sc1' % (vr(PB + 4 * i, 4), MBA, srd(SRD_MB), S_U1, 80 * i), tag='poll')

    XO = V_S
    B2 = V_S + 2
    e('v_lshlrev_b32 v%d, 3, v%d' % (OA, QQ))
    e('s_mul_i32 s%d, s%d, 40' % (S_T0, S_H))
    e('v_mov_b32 v%d, 0' % V_Y)
    e('buffer_load_dwordx2 %s, v%d, %s, s%d offen' % (vr(XO, 2), OA, srd(SRD_X), S_T0), tag='xo')
    e('buffer_load_ushort v%d, v%d, %s, 0 offen' % (B2, V_Y, srd(SRD_B2)), tag='xo')
    poll_loads()
    e('v_mul_u32_u24 v%d, 640, v%d' % (GA, HG))
    e('v_lshl_add_u32 v%d, v%d, 4, v%d' % (GA, QQ, GA))
    GB = V_W
    for i in range(8):
        e('ds_read_b128 %s, v%d offset:%d' % (vr(GB + 4 * i, 4), GA, LG + 80 * i))
    e('s_waitcnt lgkmcnt(0)')
    for i in (0, 2, 4, 6):
        for k in range(4):
            e('v_add_f32 v%d, v%d, v%d' % (GB + 4 * i + k, GB + 4 * i + k, GB + 4 * i + 4 + k))
    for i in (0, 4):
        for k in range(4):
            e('v_add_f32 v%d, v%d, v%d' % (GB + 4 * i + k, GB + 4 * i + k, GB + 4 * i + 8 + k))
    for k in range(4):
        e('v_add_f32 v%d, v%d, v%d' % (GB + k, GB + k, GB + 16 + k))

    def oct_allreduce(regs):
        for c in ('quad_perm:[1,0,3,2]', 'quad_perm:[2,3,0,1]', 'row_half_mirror'):
            for r in regs:
                e('v_add_f32_dpp v%d, v%d, v%d %s row_mask:0xf bank_mask:0xf' % (r, r, r, c))

    oct_allreduce([GB + k for k in range(4)])
    bf16r2(GB, GB + 1, GB, GB + 1, V_X)
    bf16r2(GB + 2, GB + 3, GB + 2, GB + 3, V_Y)
    a.wait_vm('xo')
    e('v_lshlrev_b32 v%d, 16, v%d' % (B2, B2))
    for k in range(4):
        e('v_add_f32 v%d, v%d, v%d' % (GB + k, GB + k, B2))
    bf16r2(GB, GB + 1, GB, GB + 1, V_X)
    bf16r2(GB + 2, GB + 3, GB + 2, GB + 3, V_Y)
    for k in range(4):
        e('v_mul_f32 v%d, s%d, v%d' % (GB + 4 + k, S_LOG2E, GB + k))
    for k in range(4):
        e('v_exp_f32 v%d, -v%d' % (GB + 4 + k, GB + 4 + k))
    for k in range(4):
        e('v_add_f32 v%d, 1.0, v%d' % (GB + 4 + k, GB + 4 + k))
    for k in range(4):
        e('v_rcp_f32 v%d, v%d' % (GB + 4 + k, GB + 4 + k))
    for k in range(4):
        e('v_mul_f32 v%d, v%d, v%d' % (GB + k, GB + k, GB + 4 + k))
    bf16r2(GB, GB + 1, GB, GB + 1, V_X)
    bf16r2(GB + 2, GB + 3, GB + 2, GB + 3, V_Y)
    XF4 = GB + 8
    e('v_lshlrev_b32 v%d, 16, v%d' % (XF4, XO))
    e('v_and_b32 v%d, 0xffff0000, v%d' % (XF4 + 1, XO))
    e('v_lshlrev_b32 v%d, 16, v%d' % (XF4 + 2, XO + 1))
    e('v_and_b32 v%d, 0xffff0000, v%d' % (XF4 + 3, XO + 1))
    e('s_mov_b32 s%d, 0' % S_CNT)
    a.label('L_poll')
    e('s_waitcnt vmcnt(0)')
    e('v_max3_u32 v%d, v%d, v%d, v%d' % (V_X, PB, PB + 1, PB + 2))
    e('v_max3_u32 v%d, v%d, v%d, v%d' % (V_Y, PB + 3, PB + 4, PB + 5))
    for k in range(6, 14, 4):
        e('v_max3_u32 v%d, v%d, v%d, v%d' % (V_X, V_X, PB + k, PB + k + 1))
        e('v_max3_u32 v%d, v%d, v%d, v%d' % (V_Y, V_Y, PB + k + 2, PB + k + 3))
    e('v_max3_u32 v%d, v%d, v%d, v%d' % (V_X, V_X, PB + 14, PB + 15))
    e('v_max_u32 v%d, v%d, v%d' % (V_X, V_X, V_Y))
    e('v_cmp_eq_u32 vcc, -1, v%d' % V_X)
    e('s_cbranch_vccz L_got')
    e('s_add_u32 s%d, s%d, 1' % (S_CNT, S_CNT))
    e('s_cmp_ge_u32 s%d, 0x4000' % S_CNT)
    e('s_cbranch_scc1 L_got')
    e('s_sleep %d' % P['POLL_SLEEP'])
    poll_loads()
    e('s_branch L_poll')
    a.label('L_got')
    for i in (0, 2):
        for k in range(4):
            e('v_add_f32 v%d, v%d, v%d' % (PB + 4 * i + k, PB + 4 * i + k, PB + 4 * i + 4 + k))
    for k in range(4):
        e('v_add_f32 v%d, v%d, v%d' % (PB + k, PB + k, PB + 8 + k))
    oct_allreduce([PB + k for k in range(4)])
    bf16r2(PB, PB + 1, PB, PB + 1, V_X)
    bf16r2(PB + 2, PB + 3, PB + 2, PB + 3, V_Y)
    for k in range(4):
        e('v_mul_f32 v%d, v%d, v%d' % (PB + k, PB + k, GB + k))
    bf16r2(PB, PB + 1, PB, PB + 1, V_X)
    bf16r2(PB + 2, PB + 3, PB + 2, PB + 3, V_Y)
    for k in range(4):
        e('v_add_f32 v%d, v%d, v%d' % (PB + k, PB + k, XF4 + k))
    e('v_cvt_pk_bf16_f32 v%d, v%d, v%d' % (PB, PB, PB + 1))
    e('v_cvt_pk_bf16_f32 v%d, v%d, v%d' % (PB + 1, PB + 2, PB + 3))
    e('v_cmp_eq_u32 vcc, 0, v%d' % HG)
    e('s_and_b64 exec, exec, vcc')
    e('buffer_store_dwordx2 %s, v%d, %s, s%d offen' % (vr(PB, 2), OA, srd(SRD_OUT), S_T0))
    a.label('L_end', flush=False)
    e('s_endpgm')

    a.raw('.section .rodata,"a"')
    a.raw('.p2align 6')
    a.raw('.amdhsa_kernel %s_kernel' % NAME)
    a.raw('  .amdhsa_next_free_vgpr 128')
    a.raw('  .amdhsa_next_free_sgpr 98')
    a.raw('  .amdhsa_accum_offset 128')
    a.raw('  .amdhsa_group_segment_fixed_size 0')
    a.raw('  .amdhsa_kernarg_size 104')
    a.raw('  .amdhsa_user_sgpr_count 2')
    a.raw('  .amdhsa_user_sgpr_kernarg_segment_ptr 1')
    a.raw('  .amdhsa_system_sgpr_workgroup_id_x 1')
    a.raw('  .amdhsa_float_denorm_mode_32 3')
    a.raw('.end_amdhsa_kernel')
    return a


if __name__ == '__main__':
    out = sys.argv[1] if len(sys.argv) > 1 else 'cdna_kernels/%s.s' % NAME
    kw = {}
    for x in sys.argv[2:]:
        k, v = x.split('=')
        kw[k] = int(v)
    a = gen(**kw)
    open(out, 'w').write(a.text())
    print('wrote', out, 'lines', len(a.lines), 'nop states', a.nops)
```

```python
import struct
import sys
import os
sys.path.insert(0, os.path.dirname(os.path.abspath(__file__)))
from asmlib import Asm

NAME = 'recurrent_scan__gqa_block_cached__mixer_token_mlp__decode'


def f2u(x):
    return struct.unpack('<I', struct.pack('<f', x))[0]


def hexf(x):
    return '0x%08x' % f2u(x)


def br4(j):
    return ((j & 1) << 3) | ((j & 2) << 1) | ((j & 4) >> 1) | ((j & 8) >> 3)


DEF = dict(
    H=4,
    NS=48,
    WN=10,
    WP=5,
    FAST0=12,
    WQ0=7,
    WQW=7,
    WOW=3,
    WONT=1,
    SNT=1,
    NP1=32,
    SMI=5,
    HB=2,
    WQNT=1,
    WOPRE=15,
    POLL_SLEEP=2,
    PRIO=1,
    DEBUG=0,
)

LQ = 0
LQ_STRIDE = 528
LML = 2176
LG = 2240
LS = 3584
LDS_BYTES = LS + 4 * 2560

MB_STRIDE = 2560

S_W = 3
SRD_X, SRD_K, SRD_V, SRD_WQ, SRD_WO = 4, 8, 12, 16, 20
SRD_W1, SRD_B1, SRD_W2, SRD_B2, SRD_OUT, SRD_DBG, SRD_MB = 24, 28, 32, 36, 40, 44, 48
S_B, S_H, S_T0, S_T1 = 52, 53, 54, 55
S_MB1, S_MB0 = 56, 58
S_OFF, S_T2, S_T3, S_T4 = 60, 61, 62, 63
S_HV = 64
S_C1, S_LOG2E, S_SCALE, S_R640 = 90, 91, 92, 93
S_U0, S_U1, S_CNT, S_J = 94, 95, 96, 97

V_L = 1
V_OFF = 2
V_OFF2 = 3
V_M = 4
V_Q = 8
V_ACC = 12
V_A = 16
V_X, V_Y = 50, 51
V_DWR = 52


def srd(n):
    return 's[%d:%d]' % (n, n + 3)


def vr(n, k):
    return 'v[%d:%d]' % (n, n + k - 1)


def gen(**kw):
    P = dict(DEF)
    P.update(kw)
    H = P['H']
    SNT = ' nt' if P['SNT'] else ''
    a = Asm()
    e = a.e

    def bf16r(dst, src):
        e('v_cvt_pk_bf16_f32 v%d, v%d, v%d' % (dst, src, src))
        e('v_and_b32 v%d, 0xffff0000, v%d' % (dst, dst))

    def bf16r2(d0, d1, s0, s1, tmp):
        e('v_cvt_pk_bf16_f32 v%d, v%d, v%d' % (tmp, s0, s1))
        e('v_lshlrev_b32 v%d, 16, v%d' % (d0, tmp))
        e('v_and_b32 v%d, 0xffff0000, v%d' % (d1, tmp))

    def dpp(op, d, s0, s1, ctrl, rm='0xf', bm='0xf'):
        return '%s_dpp v%d, v%d, v%d %s row_mask:%s bank_mask:%s' % (op, d, s0, s1, ctrl, rm, bm)

    def row_allreduce(op, regs):
        for sh in (8, 4, 2, 1):
            for r in regs:
                e(dpp(op, r, r, r, 'row_ror:%d' % sh))

    def wave_reduce_to_sgpr(op, r, sdst):
        row_allreduce(op, [r])
        e(dpp(op, r, r, r, 'row_bcast:15', rm='0xa'))
        e(dpp(op, r, r, r, 'row_bcast:31', rm='0xc'))
        e('v_readlane_b32 s%d, v%d, 63' % (sdst, r))

    def stamp(k):
        if not P['DEBUG']:
            return
        e('s_memrealtime s[98:99]')
        e('s_waitcnt lgkmcnt(0)')
        e('v_writelane_b32 v0, s98, %d' % k)

    def stamp_out():
        if not P['DEBUG']:
            return
        e('s_mov_b64 exec, -1')
        e('s_add_u32 s64, s88, 0x100000')
        e('s_addc_u32 s65, s89, 0')
        e('s_mov_b32 s66, 0x40000')
        e('s_mov_b32 s67, 0x00020000')
        e('s_lshl_b32 s68, s2, 4')
        e('s_add_u32 s68, s68, s%d' % S_W)
        e('s_lshl_b32 s68, s68, 6')
        e('v_lshlrev_b32 v%d, 2, v%d' % (V_L, V_L))
        e('s_mov_b64 exec, 0xffff')
        saved = list(a.vm)
        e('buffer_store_dword v0, v%d, s[64:67], s68 offen' % V_L)
        a.vm = saved

    def base(n, p, off=None):
        if off is None:
            e('s_mov_b64 s[%d:%d], s[%d:%d]' % (n, n + 1, p, p + 1))
        else:
            e('s_add_u32 s%d, s%d, s%d' % (n, p, off))
            e('s_addc_u32 s%d, s%d, 0' % (n + 1, p + 1))

    def srd_tail(n, sz):
        e('s_mov_b32 s%d, %d' % (n + 2, sz))
        e('s_mov_b32 s%d, 0x00020000' % (n + 3))

    def merge_ops(level, dst, x0, x1, tx, ty):
        if level == 1:
            return [dpp('v_add_f32', dst, x0, x0, 'row_mirror', bm='0x3'),
                    dpp('v_add_f32', dst, x1, x1, 'row_mirror', bm='0xc')]
        if level == 2:
            return [dpp('v_add_f32', dst, x0, x0, 'row_half_mirror', bm='0x5'),
                    dpp('v_add_f32', dst, x1, x1, 'row_half_mirror', bm='0xa')]
        m = S_MB1 if level == 3 else S_MB0
        qp = 'quad_perm:[2,3,0,1]' if level == 3 else 'quad_perm:[1,0,3,2]'
        return ['v_cndmask_b32 v%d, v%d, v%d, s[%d:%d]' % (tx, x0, x1, m, m + 1),
                'v_cndmask_b32 v%d, v%d, v%d, s[%d:%d]' % (ty, x1, x0, m, m + 1),
                dpp('v_add_f32', dst, ty, tx, qp)]

    def build_A(aset, preg, lane):
        for r in range(4):
            e(dpp('v_and_b32', V_A + 4 * aset + r, preg, V_M + r, 'row_newbcast:%d' % lane))

    def mfma(d, aset, b, c):
        e('v_mfma_f32_16x16x32_bf16 %s, %s, %s, %s' % (vr(d, 4), vr(V_A + 4 * aset, 4), vr(b, 4),
                                                   '0' if c is None else vr(c, 4)))

    def make_masks(G, C):
        e('s_mov_b32 s%d, 0xcccccccc' % S_MB1)
        e('s_mov_b32 s%d, 0xcccccccc' % (S_MB1 + 1))
        e('s_mov_b32 s%d, 0xaaaaaaaa' % S_MB0)
        e('s_mov_b32 s%d, 0xaaaaaaaa' % (S_MB0 + 1))
        e('v_mov_b32 v%d, 0xffff' % V_X)
        e('v_mov_b32 v%d, 0xffff0000' % V_Y)
        e('v_cndmask_b32 v%d, v%d, v%d, s[%d:%d]' % (V_X, V_X, V_Y, S_MB0, S_MB0 + 1))
        e('v_lshrrev_b32 v%d, 1, v%d' % (V_Y, C))
        for r in range(4):
            e('v_cmp_eq_u32 vcc, %d, v%d' % (r, V_Y))
            e('v_cndmask_b32 v%d, 0, v%d, vcc' % (V_M + r, V_X))
        e('v_lshlrev_b32 v%d, 5, v%d' % (V_DWR, C))
        e('v_lshl_add_u32 v%d, v%d, 4, v%d' % (V_DWR, G, V_DWR))

    kbeta = 0.7978845608028654
    kkappa = 0.044715
    log2e = 1.4426950408889634
    c0 = -2.0 * kbeta * log2e
    c1 = c0 * kkappa

    a.raw('; @launch grid=(256,1,1) block=(512,1,1) lds=%d' % LDS_BYTES)
    a.raw('.amdgcn_target "amdgcn-amd-amdhsa--gfx950"')
    a.raw('.text')
    a.raw('.globl %s_kernel' % NAME)
    a.raw('.p2align 8')
    a.raw('.type %s_kernel,@function' % NAME)
    a.raw('%s_kernel:' % NAME)

    e('s_load_dwordx16 s[64:79], s[0:1], 0')
    e('s_load_dwordx8 s[80:87], s[0:1], 64')
    e('s_load_dwordx2 s[88:89], s[0:1], 96')
    e('s_cmp_ge_u32 s2, 256')
    e('s_cbranch_scc1 L_end')
    e('v_lshrrev_b32 v%d, 6, v0' % V_OFF)
    e('v_and_b32 v%d, 63, v0' % V_L)
    e('v_readfirstlane_b32 s%d, v%d' % (S_W, V_OFF))
    HB = P['HB']
    e('s_and_b32 s%d, s2, 7' % S_T0)
    e('s_lshr_b32 s%d, s2, 3' % S_T1)
    e('s_and_b32 s%d, s%d, %d' % (S_H, S_T0, (32 >> HB) - 1))
    e('s_lshl_b32 s%d, s%d, %d' % (S_H, S_H, HB))
    e('s_and_b32 s%d, s%d, %d' % (S_B, S_T1, (1 << HB) - 1))
    e('s_or_b32 s%d, s%d, s%d' % (S_H, S_H, S_B))
    e('s_lshr_b32 s%d, s%d, %d' % (S_B, S_T1, HB))
    if HB > 2:
        e('s_andn2_b32 s%d, s%d, %d' % (S_T0, S_T0, (32 >> HB) - 1))
        e('s_add_u32 s%d, s%d, s%d' % (S_B, S_B, S_T0))
    e('s_mul_i32 s%d, s%d, %d' % (S_U0, S_B, 32 * MB_STRIDE))
    srd_tail(SRD_MB, 32 * MB_STRIDE)
    srd_tail(SRD_DBG, 256)
    e('s_cmp_ge_u32 s%d, 4' % S_W)
    e('s_cbranch_scc1 L_helper')

    V_S = 24
    V_T = 40
    V_R1, V_R2, V_R3 = 44, 46, 48
    V_RDY = 53
    V_RDA = 54
    V_MBO = 55
    V_G, V_C = 56, 57
    V_MX = 58
    V_KB = 64
    NS, WN, WP = P['NS'], P['WN'], P['WP']
    assert V_KB + 4 * NS <= 256
    NL = 512

    if P['PRIO']:
        e('s_setprio %d' % P['PRIO'])
    e('s_lshl_b32 s%d, s%d, 5' % (S_T2, S_B))
    e('s_add_u32 s%d, s%d, s%d' % (S_T2, S_T2, S_H))
    e('s_lshl_b32 s%d, s%d, 20' % (S_T2, S_T2))
    srd_tail(SRD_K, 1 << 20)
    srd_tail(SRD_V, 1 << 20)
    e('s_mul_i32 s%d, s%d, %d' % (S_T1, S_W, H * 1024))
    e('v_lshlrev_b32 v%d, 4, v%d' % (V_OFF, V_L))
    e('v_add_u32 v%d, s%d, v%d' % (V_OFF, S_T1, V_OFF))
    e('s_waitcnt lgkmcnt(0)')
    base(SRD_K, 66, S_T2)

    st = {'soff': None, 'next': 0}

    def issue(throttle=None):
        n = st['next']
        if n >= NL:
            return
        if throttle is not None and n - throttle >= 0:
            a.wait_vm('kv%d' % (n - throttle))
        t, m = divmod(n, 256)
        r, i = divmod(m, H)
        so = r * 4 * H * 1024 + (i // 4) * 4096
        if st['soff'] != so:
            e('s_mov_b32 s%d, %d' % (S_OFF, so))
            st['soff'] = so
        e('buffer_load_dwordx4 %s, v%d, %s, s%d offen offset:%d nt' %
          (vr(V_KB + 4 * (n % NS), 4), V_OFF, srd(SRD_V if t else SRD_K), S_OFF, (i % 4) * 1024), tag='kv%d' % n)
        st['next'] = n + 1

    for n in range(WP):
        issue()
    stamp(0)
    if P['DEBUG']:
        e('s_getreg_b32 s98, hwreg(HW_REG_XCC_ID)')
        e('v_writelane_b32 v0, s98, 15')
    base(SRD_V, 68, S_T2)
    base(SRD_MB, 88, S_U0)
    e('s_mov_b32 s%d, %s' % (S_LOG2E, hexf(log2e)))
    e('s_mov_b32 s%d, %s' % (S_SCALE, hexf(128 ** -0.5)))
    e('v_lshrrev_b32 v%d, 4, v%d' % (V_G, V_L))
    e('v_and_b32 v%d, 15, v%d' % (V_C, V_L))
    make_masks(V_G, V_C)
    e('s_mul_i32 s%d, s%d, %d' % (S_T0, S_W, LQ_STRIDE))
    e('v_add_u32 v%d, s%d, v%d' % (V_DWR, S_T0, V_DWR))
    e('s_lshl_b32 s%d, s%d, 6' % (S_T0, S_W))
    e('v_add_u32 v%d, s%d, v%d' % (V_X, S_T0, V_L))
    e('v_lshlrev_b32 v%d, 4, v%d' % (V_RDA, V_X))
    e('v_mul_u32_u24 v%d, 52429, v%d' % (V_MBO, V_X))
    e('v_lshrrev_b32 v%d, 18, v%d' % (V_MBO, V_MBO))
    e('v_mul_u32_u24 v%d, %d, v%d' % (V_MBO, MB_STRIDE - 80, V_MBO))
    e('v_add_u32 v%d, v%d, v%d' % (V_MBO, V_MBO, V_RDA))
    e('s_mul_i32 s%d, s%d, 80' % (S_U0, S_H))
    e('v_lshlrev_b32 v%d, 5, v%d' % (V_OFF2, V_C))
    while st['next'] < NS:
        issue(throttle=WP if st['next'] < P['NP1'] else WN)
    stamp(1)
    e('s_branch L_smain')
    cut1 = len(a.lines)
    a.label('L_smain', flush=False)
    e('s_barrier')
    qb = [V_S, V_S + 4, V_S + 8, V_S + 12, V_ACC, V_A, V_A + 4, V_T]
    for pw in range(4):
        e('ds_read_b128 %s, v%d offset:%d' % (vr(qb[2 * pw], 4), V_OFF2, LQ + pw * LQ_STRIDE))
        e('ds_read_b128 %s, v%d offset:%d' % (vr(qb[2 * pw + 1], 4), V_OFF2, LQ + pw * LQ_STRIDE + 16))
    e('s_waitcnt lgkmcnt(4)')
    for k in range(4):
        e('v_add_f32 v%d, v%d, v%d' % (qb[0] + k, qb[0] + k, qb[2] + k))
        e('v_add_f32 v%d, v%d, v%d' % (qb[1] + k, qb[1] + k, qb[3] + k))
    e('s_waitcnt lgkmcnt(0)')
    for k in range(4):
        e('v_add_f32 v%d, v%d, v%d' % (qb[4] + k, qb[4] + k, qb[6] + k))
        e('v_add_f32 v%d, v%d, v%d' % (qb[5] + k, qb[5] + k, qb[7] + k))
    for k in range(4):
        e('v_add_f32 v%d, v%d, v%d' % (qb[0] + k, qb[0] + k, qb[4] + k))
        e('v_add_f32 v%d, v%d, v%d' % (qb[1] + k, qb[1] + k, qb[5] + k))
    for k in range(4):
        e('v_cvt_pk_bf16_f32 v%d, v%d, v%d' % (V_Q + k, qb[k >> 1] + 2 * (k & 1), qb[k >> 1] + 2 * (k & 1) + 1))
    stamp(5)

    def after_step(n):
        dist = st['next'] - (n + 1)
        if dist >= WN:
            if n >= P['FAST0'] and (n & 1):
                return
            issue(throttle=WN)
        else:
            issue()

    kpend = []
    for n in range(256):
        a.wait_vm('kv%d' % n)
        kb = V_KB + 4 * (n % NS)
        T = V_T + (n & 3)
        for k in range(4):
            e('v_dot2_f32_bf16 v%d, v%d, v%d, %s' % (T, kb + k, V_Q + k, '0' if k == 0 else 'v%d' % T))
        after_step(n)
        for op in kpend:
            e(op)
        kpend = []
        j = n & 15
        if j & 1:
            k1 = (j >> 1) & 1
            kpend += merge_ops(1, V_R1 + k1, V_T + ((n - 1) & 3), V_T + (n & 3), V_X, V_Y)
            if j & 2:
                k2 = (j >> 2) & 1
                kpend += merge_ops(2, V_R2 + k2, V_R1, V_R1 + 1, V_X, V_Y)
                if j & 4:
                    k3 = (j >> 3) & 1
                    kpend += merge_ops(3, V_R3 + k3, V_R2, V_R2 + 1, V_X, V_Y)
                    if j & 8:
                        s = V_S + (n >> 4)
                        kpend += merge_ops(4, s, V_R3, V_R3 + 1, V_X, V_Y)
                        kpend += ['v_cvt_pk_bf16_f32 v%d, v%d, v%d' % (s, s, s),
                                  'v_and_b32 v%d, 0xffff0000, v%d' % (s, s),
                                  'v_mul_f32 v%d, s%d, v%d' % (s, S_SCALE, s),
                                  'v_cvt_pk_bf16_f32 v%d, v%d, v%d' % (s, s, s),
                                  'v_and_b32 v%d, 0xffff0000, v%d' % (s, s)]
                        if n >> 4 == 0:
                            kpend += ['v_mov_b32 v%d, v%d' % (V_MX, s)]
                        else:
                            kpend += ['v_max_f32 v%d, v%d, v%d' % (V_MX, V_MX, s)]
    for op in kpend:
        e(op)
    stamp(6)
    smi = [P['SMI']]

    def sm_issue():
        if smi[0] > 0:
            smi[0] -= 1
            issue(throttle=WN)

    wave_reduce_to_sgpr('v_max_f32', V_MX, S_T0)
    e('v_mov_b32 v%d, s%d' % (V_MX, S_T0))
    e('v_mul_f32 v%d, s%d, v%d' % (V_X, S_LOG2E, V_MX))
    sm_issue()
    for k in range(16):
        e('v_fma_f32 v%d, v%d, s%d, -v%d' % (V_T + (k & 3), V_S + k, S_LOG2E, V_X))
        e('v_exp_f32 v%d, v%d' % (V_T + (k & 3), V_T + (k & 3)))
        if k == 1:
            e('v_mov_b32 v%d, v%d' % (V_MX + 1, V_T))
        elif k >= 2:
            e('v_add_f32 v%d, v%d, v%d' % (V_MX + 1, V_MX + 1, V_T + ((k - 1) & 3)))
    e('v_add_f32 v%d, v%d, v%d' % (V_MX + 1, V_MX + 1, V_T + 3))
    sm_issue()
    wave_reduce_to_sgpr('v_add_f32', V_MX + 1, S_T1)
    e('s_lshl_b32 s%d, s%d, 3' % (S_T0, S_W))
    e('v_mov_b32 v%d, s%d' % (V_MX + 1, S_T1))
    e('v_mov_b32 v%d, s%d' % (V_X, S_T0))
    e('s_mov_b64 exec, 1')
    e('ds_write_b64 v%d, %s offset:%d' % (V_X, vr(V_MX, 2), LML))
    e('s_mov_b64 exec, -1')
    e('v_and_b32 v%d, 3, v%d' % (V_X, V_L))
    e('v_lshlrev_b32 v%d, 3, v%d' % (V_X, V_X))
    sm_issue()
    sm_issue()
    e('s_waitcnt lgkmcnt(0)')
    e('s_barrier')
    e('ds_read_b64 %s, v%d offset:%d' % (vr(V_R1, 2), V_X, LML))
    while smi[0] > 0:
        sm_issue()
    e('s_waitcnt lgkmcnt(0)')
    e(dpp('v_max_f32', V_R2, V_R1, V_R1, 'quad_perm:[1,0,3,2]'))
    e(dpp('v_max_f32', V_R2, V_R2, V_R2, 'quad_perm:[2,3,0,1]'))
    e('v_sub_f32 v%d, v%d, v%d' % (V_R1, V_R1, V_R2))
    e('v_mul_f32 v%d, s%d, v%d' % (V_R1, S_LOG2E, V_R1))
    e('v_exp_f32 v%d, v%d' % (V_R1, V_R1))
    e('v_mul_f32 v%d, s%d, v%d' % (V_X, S_LOG2E, V_R2))
    e('v_mul_f32 v%d, v%d, v%d' % (V_R1, V_R1, V_R1 + 1))
    e(dpp('v_add_f32', V_R1, V_R1, V_R1, 'quad_perm:[1,0,3,2]'))
    e(dpp('v_add_f32', V_R1, V_R1, V_R1, 'quad_perm:[2,3,0,1]'))
    e('v_rcp_f32 v%d, v%d' % (V_R1, V_R1))

    def make_P(k):
        s = V_S + k
        e('v_fma_f32 v%d, v%d, s%d, -v%d' % (s, s, S_LOG2E, V_X))
        e('v_exp_f32 v%d, v%d' % (s, s))
        e('v_mul_f32 v%d, v%d, v%d' % (s, s, V_R1))
        e('v_cvt_pk_bf16_f32 v%d, v%d, v%d' % (s, s, s))

    make_P(0)
    build_A(0, V_S, br4(0))
    stamp(7)
    for m in range(256):
        n = 256 + m
        a.wait_vm('kv%d' % n)
        vb = V_KB + 4 * (n % NS)
        mfma(V_ACC, m & 1, vb, None if m == 0 else V_ACC)
        if m + 1 < 256:
            build_A((m + 1) & 1, V_S + ((m + 1) >> 4), br4((m + 1) & 15))
        after_step(n)
        if (m & 15) == 4 and (m >> 4) + 1 < 16:
            make_P((m >> 4) + 1)
    stamp(8)
    e('s_mov_b32 exec_hi, 0')
    e('ds_write_b128 v%d, %s offset:%d' % (V_DWR, vr(V_ACC, 4), LQ))
    e('s_mov_b32 exec_hi, -1')
    e('s_waitcnt lgkmcnt(0)')
    e('s_barrier')
    e('s_cmp_eq_u32 s%d, 2' % S_W)
    e('s_cselect_b32 s%d, 0, -1' % S_T1)
    e('s_cmp_eq_u32 s%d, 3' % S_W)
    e('s_barrier')
    e('s_cbranch_scc1 L_send')
    stamp(10)
    e('s_mov_b32 exec_hi, s%d' % S_T1)
    RB = V_KB
    for k in range(4):
        e('ds_read_b128 %s, v%d offset:%d' % (vr(RB + 4 * k, 4), V_RDA, LS + k * 2560))
    e('s_waitcnt lgkmcnt(2)')
    for k in range(4):
        e('v_add_f32 v%d, v%d, v%d' % (RB + k, RB + k, RB + 4 + k))
    e('s_waitcnt lgkmcnt(0)')
    for k in range(4):
        e('v_add_f32 v%d, v%d, v%d' % (RB + 8 + k, RB + 8 + k, RB + 12 + k))
    for k in range(4):
        e('v_add_f32 v%d, v%d, v%d' % (RB + k, RB + k, RB + 8 + k))
    for k in range(4):
        e('v_min_u32 v%d, -2, v%d' % (RB + k, RB + k))
    e('buffer_store_dwordx4 %s, v%d, %s, s%d offen sc1' % (vr(RB, 4), V_MBO, srd(SRD_MB), S_U0))
    stamp(11)
    a.label('L_send')
    stamp_out()
    e('s_endpgm')

    cut2 = len(a.lines)
    a.label('L_helper', flush=False)
    a.hist = []
    a.vm = []
    XR = 24
    XF = 29
    T0, T1, T2, MEAN, SD, RINV = 39, 40, 41, 42, 43, 44
    XQ = 45
    XG = 48
    VG, VC = 53, 54
    V_GF = 56
    V_XO = 60
    V_OA, V_MBA, V_ORD, V_LSW, V_HG = 64, 65, 66, 67, 68
    V_B2 = 69
    V_XOR = 70
    V_SA = 72
    V_W = 96

    e('s_sub_u32 s%d, s%d, 4' % (S_J, S_W))
    e('s_mul_i32 s%d, s%d, 1280' % (S_OFF, S_B))
    e('s_lshl_b32 s%d, s%d, 8' % (S_T3, S_H))
    srd_tail(SRD_X, 1280)
    e('s_sub_u32 s%d, %d, s%d' % (SRD_WQ + 2, 640 * 8192, S_T3))
    e('s_mov_b32 s%d, 0x00020000' % (SRD_WQ + 3))
    e('v_lshrrev_b32 v%d, 4, v%d' % (VG, V_L))
    e('v_and_b32 v%d, 15, v%d' % (VC, V_L))
    e('v_lshlrev_b32 v%d, 2, v%d' % (V_X, V_L))
    e('s_mul_i32 s%d, s%d, 160' % (S_T0, S_J))
    e('s_mul_i32 s%d, s%d, 20' % (S_T1, S_B))
    e('s_add_u32 s%d, s%d, s%d' % (S_T4, S_T0, S_T1))
    e('v_lshlrev_b32 v%d, 2, v%d' % (V_Y, VC))
    e('v_add_u32 v%d, s%d, v%d' % (V_Y, S_T4, V_Y))
    for k in range(3):
        e('v_add_u32 v%d, %d, v%d' % (XQ + k, 64 * k, V_Y))
        e('v_subrev_u32 v%d, 640, v%d' % (T0, XQ + k))
        e('v_min_u32 v%d, v%d, v%d' % (XQ + k, XQ + k, T0))
        e('v_add_lshl_u32 v%d, v%d, v%d, 1' % (XQ + k, XQ + k, VG))
    e('v_lshlrev_b32 v%d, 13, v%d' % (V_OFF, VG))
    e('v_lshl_add_u32 v%d, v%d, 4, v%d' % (V_OFF, VC, V_OFF))
    e('v_lshlrev_b32 v%d, 1, v%d' % (XG, V_L))
    e('s_mul_i32 s%d, s%d, 40' % (S_T0, S_H))
    e('s_lshl_b32 s%d, s%d, 13' % (S_T4, S_T4))
    e('s_waitcnt lgkmcnt(0)')
    base(SRD_X, 64, S_OFF)
    base(SRD_WQ, 70, S_T3)
    for i in range(5):
        e('buffer_load_dword v%d, v%d, %s, 0 offen offset:%d%s' % (XR + i, V_X, srd(SRD_X), 256 * i, SNT), tag='x')
    for k in range(3):
        e('buffer_load_ushort v%d, v%d, %s, 0 offen%s' % (XQ + k, XQ + k, srd(SRD_X), SNT), tag='x')
    e('buffer_load_ushort v%d, v%d, %s, s%d offen%s' % (XG, XG, srd(SRD_X), S_T0, SNT), tag='x')
    wq = {'next': 0}

    def issue_wq():
        t = wq['next']
        if t >= 40:
            return
        e('buffer_load_dwordx4 %s, v%d, %s, s%d offen%s' % (vr(V_W + 4 * t, 4), V_OFF, srd(SRD_WQ), S_T4, ' nt' if P['WQNT'] else ''), tag='wq%d' % t)
        if t < 39:
            e('s_add_u32 s%d, s%d, %d' % (S_T4, S_T4, 4 * 8192))
            e('s_cmp_ge_u32 s%d, %d' % (S_T4, 640 * 8192))
            e('s_cselect_b32 s%d, 0, s%d' % (S_T4, S_T4))
        wq['next'] = t + 1

    for t in range(P['WQ0']):
        issue_wq()
    stamp(0)
    if P['DEBUG']:
        e('s_getreg_b32 s98, hwreg(HW_REG_XCC_ID)')
        e('v_writelane_b32 v0, s98, 15')
    base(SRD_MB, 88, S_U0)
    e('s_mul_i32 s%d, s%d, %d' % (S_U1, S_H, MB_STRIDE))
    base(SRD_OUT, 84, S_OFF)
    srd_tail(SRD_OUT, 1280)
    e('s_mul_i32 s%d, s%d, 163840' % (S_T2, S_H))
    base(SRD_WO, 72, S_T2)
    srd_tail(SRD_WO, 163840)
    for n, p in ((SRD_W1, 76), (SRD_B1, 78), (SRD_W2, 80)):
        base(n, p)
        srd_tail(n, 3456)
    base(SRD_B2, 82)
    srd_tail(SRD_B2, 2)
    base(SRD_DBG, 86)
    e('s_mov_b32 s%d, %s' % (S_C1, hexf(c1)))
    e('s_mov_b32 s%d, %s' % (S_LOG2E, hexf(log2e)))
    e('s_mov_b32 s%d, %s' % (S_R640, hexf(1.0 / 640)))
    make_masks(VG, VC)

    def ln_stats(src):
        e('v_add_f32 v%d, v%d, v%d' % (T0, src, src + 1))
        e('v_add_f32 v%d, v%d, v%d' % (T1, src + 2, src + 3))
        for i in range(4, 10, 2):
            e('v_add_f32 v%d, v%d, v%d' % (T0, T0, src + i))
            e('v_add_f32 v%d, v%d, v%d' % (T1, T1, src + i + 1))
        e('v_add_f32 v%d, v%d, v%d' % (T0, T0, T1))
        wave_reduce_to_sgpr('v_add_f32', T0, S_T0)
        e('v_mov_b32 v%d, s%d' % (MEAN, S_R640))
        e('v_mul_f32 v%d, s%d, v%d' % (MEAN, S_T0, MEAN))
        e('v_sub_f32 v%d, v%d, v%d' % (T2, src, MEAN))
        e('v_mul_f32 v%d, v%d, v%d' % (T0, T2, T2))
        e('v_sub_f32 v%d, v%d, v%d' % (T2, src + 1, MEAN))
        e('v_mul_f32 v%d, v%d, v%d' % (T1, T2, T2))
        for i in range(2, 10):
            e('v_sub_f32 v%d, v%d, v%d' % (T2, src + i, MEAN))
            e('v_fmac_f32 v%d, v%d, v%d' % (T0 if i % 2 == 0 else T1, T2, T2))
        e('v_add_f32 v%d, v%d, v%d' % (T0, T0, T1))
        wave_reduce_to_sgpr('v_add_f32', T0, S_T0)
        e('v_mov_b32 v%d, s%d' % (SD, S_R640))
        e('v_mul_f32 v%d, s%d, v%d' % (SD, S_T0, SD))
        bf16r2(MEAN, SD, MEAN, SD, T0)
        e('v_add_f32 v%d, %s, v%d' % (SD, hexf(1e-5), SD))
        bf16r(SD, SD)
        e('v_sqrt_f32 v%d, v%d' % (SD, SD))
        bf16r(SD, SD)
        e('v_rcp_f32 v%d, v%d' % (RINV, SD))

    def ln_apply(pairs):
        for (r0, r1) in pairs:
            e('v_sub_f32 v%d, v%d, v%d' % (r0, r0, MEAN))
            e('v_sub_f32 v%d, v%d, v%d' % (r1, r1, MEAN))
            bf16r2(r0, r1, r0, r1, T2)
            e('v_mul_f32 v%d, v%d, v%d' % (T0, r0, RINV))
            e('v_mul_f32 v%d, v%d, v%d' % (T1, r1, RINV))
            e('v_fma_f32 v%d, -v%d, v%d, v%d' % (r0, T0, SD, r0))
            e('v_fma_f32 v%d, -v%d, v%d, v%d' % (r1, T1, SD, r1))
            e('v_fmac_f32 v%d, v%d, v%d' % (T0, r0, RINV))
            e('v_fmac_f32 v%d, v%d, v%d' % (T1, r1, RINV))
            bf16r2(r0, r1, T0, T1, T2)

    stamp(1)
    a.wait_vm('x')
    stamp(2)
    for i in range(5):
        e('v_lshlrev_b32 v%d, 16, v%d' % (XF + 2 * i, XR + i))
        e('v_and_b32 v%d, 0xffff0000, v%d' % (XF + 2 * i + 1, XR + i))
    for r in (XQ, XQ + 1, XQ + 2, XG):
        e('v_lshlrev_b32 v%d, 16, v%d' % (r, r))
    ln_stats(XF)
    ln_apply([(XQ, XQ + 1), (XQ + 2, XG)])
    for k in range(3):
        e('v_cvt_pk_bf16_f32 v%d, v%d, v%d' % (XQ + k, XQ + k, XQ + k))
    stamp(3)
    build_A(0, XQ, 0)
    for t in range(40):
        if t + 1 < 40:
            build_A((t + 1) & 1, XQ + ((t + 1) >> 4), (t + 1) & 15)
        a.wait_vm('wq%d' % t)
        mfma(V_ACC, t & 1, V_W + 4 * t, None if t == 0 else V_ACC)
        while wq['next'] < min(40, t + 1 + P['WQW']):
            issue_wq()
    e('s_mul_i32 s%d, s%d, %d' % (S_T0, S_J, LQ_STRIDE))
    e('v_add_u32 v%d, s%d, v%d' % (V_X, S_T0, V_DWR))
    e('s_mov_b32 exec_hi, 0')
    e('ds_write_b128 v%d, %s offset:%d' % (V_X, vr(V_ACC, 4), LQ))
    e('s_mov_b32 exec_hi, -1')
    e('s_waitcnt lgkmcnt(0)')
    stamp(4)
    e('s_barrier')
    GR = V_W
    e('v_lshlrev_b32 v%d, 2, v%d' % (V_OFF, V_L))
    e('s_lshl_b32 s%d, s%d, 8' % (S_T4, S_J))

    def gate_loads():
        e('buffer_load_dword v%d, v%d, %s, s%d offen%s' % (GR, V_OFF, srd(SRD_W1), S_T4, SNT))
        e('buffer_load_dword v%d, v%d, %s, s%d offen%s' % (GR + 1, V_OFF, srd(SRD_B1), S_T4, SNT))
        e('buffer_load_dword v%d, v%d, %s, s%d offen%s' % (GR + 2, V_OFF, srd(SRD_W2), S_T4, SNT))

    e('s_and_b32 s%d, s%d, 7' % (S_T0, S_H))
    e('s_cmp_lg_u32 s%d, 0' % S_T0)
    e('s_cbranch_scc1 L_noclear')
    for i in range(4):
        e('v_mov_b32 v%d, -1' % (V_ACC + i))
    e('v_lshlrev_b32 v%d, 4, v%d' % (V_X, V_L))
    e('s_mul_i32 s%d, s%d, 5120' % (S_T0, S_J))
    e('s_add_u32 s%d, s%d, s%d' % (S_T0, S_T0, S_U1))
    for i in range(5):
        if i == 4:
            e('s_add_u32 s%d, s%d, 4096' % (S_T0, S_T0))
        e('buffer_store_dwordx4 %s, v%d, %s, s%d offen offset:%d sc1' % (vr(V_ACC, 4), V_X, srd(SRD_MB), S_T0, 1024 * (i % 4)))
    a.label('L_noclear')
    a.vm = []
    gate_loads()
    ln_apply([(XF + 2 * i, XF + 2 * i + 1) for i in range(5)])
    ln_stats(XF)
    ln_apply([(XG, XF)])
    for t in range(20):
        e('v_readlane_b32 s%d, v%d, %d' % (S_HV + t, XG, t))
    W1A, W1B, B1A, B1B, W2P, C0 = V_W + 4, V_W + 5, V_W + 6, V_W + 7, V_W + 8, V_W + 9
    GA_ = V_W + 12
    GY = V_W + 24
    e('v_mov_b32 v%d, %s' % (C0, hexf(c0)))
    for t in range(20):
        e('v_mov_b32 v%d, 0' % (GY + t))
    e('s_mov_b32 s%d, 0' % S_CNT)
    a.label('L_gate')
    e('s_waitcnt vmcnt(0)')
    e('v_lshlrev_b32 v%d, 16, v%d' % (W1A, GR))
    e('v_and_b32 v%d, 0xffff0000, v%d' % (W1B, GR))
    e('v_lshlrev_b32 v%d, 16, v%d' % (B1A, GR + 1))
    e('v_and_b32 v%d, 0xffff0000, v%d' % (B1B, GR + 1))
    e('v_mov_b32 v%d, v%d' % (W2P, GR + 2))
    e('s_add_u32 s%d, s%d, 1024' % (S_T4, S_T4))
    gate_loads()

    def col_ops(t, tb):
        ga, gb, gp, xa, xb = tb, tb + 1, tb + 2, tb + 3, tb + 4
        s = S_HV + t
        return [
            'v_mul_f32 v%d, s%d, v%d' % (ga, s, W1A),
            'v_mul_f32 v%d, s%d, v%d' % (gb, s, W1B),
            'v_cvt_pk_bf16_f32 v%d, v%d, v%d' % (gp, ga, gb),
            'v_lshlrev_b32 v%d, 16, v%d' % (ga, gp),
            'v_and_b32 v%d, 0xffff0000, v%d' % (gb, gp),
            'v_add_f32 v%d, v%d, v%d' % (ga, ga, B1A),
            'v_add_f32 v%d, v%d, v%d' % (gb, gb, B1B),
            'v_cvt_pk_bf16_f32 v%d, v%d, v%d' % (gp, ga, gb),
            'v_lshlrev_b32 v%d, 16, v%d' % (ga, gp),
            'v_and_b32 v%d, 0xffff0000, v%d' % (gb, gp),
            'v_mul_f32 v%d, v%d, v%d' % (xa, ga, ga),
            'v_mul_f32 v%d, v%d, v%d' % (xb, gb, gb),
            'v_fma_f32 v%d, v%d, s%d, v%d' % (xa, xa, S_C1, C0),
            'v_fma_f32 v%d, v%d, s%d, v%d' % (xb, xb, S_C1, C0),
            'v_mul_f32 v%d, v%d, v%d' % (xa, xa, ga),
            'v_mul_f32 v%d, v%d, v%d' % (xb, xb, gb),
            'v_exp_f32 v%d, v%d' % (xa, xa),
            'v_exp_f32 v%d, v%d' % (xb, xb),
            'v_add_f32 v%d, 1.0, v%d' % (xa, xa),
            'v_add_f32 v%d, 1.0, v%d' % (xb, xb),
            'v_rcp_f32 v%d, v%d' % (xa, xa),
            'v_rcp_f32 v%d, v%d' % (xb, xb),
            'v_mul_f32 v%d, v%d, v%d' % (ga, ga, xa),
            'v_mul_f32 v%d, v%d, v%d' % (gb, gb, xb),
            'v_cvt_pk_bf16_f32 v%d, v%d, v%d' % (gp, ga, gb),
            'v_dot2_f32_bf16 v%d, v%d, v%d, v%d' % (GY + t, gp, W2P, GY + t),
        ]

    for t in range(0, 20, 2):
        o0, o1 = col_ops(t, GA_), col_ops(t + 1, GA_ + 5)
        for x, y in zip(o0, o1):
            e(x)
            e(y)
    e('s_add_u32 s%d, s%d, 1' % (S_CNT, S_CNT))
    e('s_cmp_lt_u32 s%d, 4' % S_CNT)
    a.flush_hazards()
    e('s_cbranch_scc1 L_gate')
    R1 = GA_
    for k in range(10):
        for op in merge_ops(1, R1 + k, GY + 2 * k, GY + 2 * k + 1, V_X, V_Y):
            e(op)
    for k in range(5):
        for op in merge_ops(2, GY + k, R1 + 2 * k, R1 + 2 * k + 1, V_X, V_Y):
            e(op)
    for k in range(2):
        for op in merge_ops(3, R1 + k, GY + 2 * k, GY + 2 * k + 1, V_X, V_Y):
            e(op)
    e(dpp('v_add_f32', GY + 4, GY + 4, GY + 4, 'quad_perm:[2,3,0,1]'))
    for op in merge_ops(4, GY, R1, R1 + 1, V_X, V_Y):
        e(op)
    e(dpp('v_add_f32', GY + 4, GY + 4, GY + 4, 'quad_perm:[1,0,3,2]'))
    e('v_bfrev_b32 v%d, v%d' % (T0, V_L))
    e('v_lshrrev_b32 v%d, 28, v%d' % (T0, T0))
    e('v_and_b32 v%d, 3, v%d' % (T1, T0))
    e('v_mul_u32_u24 v%d, 80, v%d' % (T2, VG))
    e('s_mul_i32 s%d, s%d, 320' % (S_T0, S_J))
    e('v_add_u32 v%d, s%d, v%d' % (T2, S_T0, T2))
    e('v_lshl_add_u32 v%d, v%d, 2, v%d' % (T0, T0, T2))
    e('v_lshl_add_u32 v%d, v%d, 2, v%d' % (T1, T1, T2))
    e('ds_write_b32 v%d, v%d offset:%d' % (T0, GY, LG))
    e('ds_write_b32 v%d, v%d offset:%d' % (T1, GY + 4, LG + 64))
    e('s_waitcnt vmcnt(0)')
    a.vm = []
    stamp(5)
    e('v_mul_u32_u24 v%d, 1280, v%d' % (V_OFF2, VG))
    e('v_lshl_add_u32 v%d, v%d, 4, v%d' % (V_OFF2, VC, V_OFF2))
    e('s_mul_i32 s%d, s%d, %d' % (S_T4, S_J, 32 * 1280))
    def wo_loads(i0, i1):
        for i in range(i0, i1):
            t, seg = divmod(i, 5)
            if i >= P['WOW']:
                a.wait_vm('wo%d' % (i - P['WOW']))
            if seg == 0 and t > 0:
                e('s_add_u32 s%d, s%d, %d' % (S_T4, S_T4, 4 * 1280))
            e('buffer_load_dwordx4 %s, v%d, %s, s%d offen offset:%d%s' %
              (vr(V_W + 4 * i, 4), V_OFF2, srd(SRD_WO), S_T4, seg * 256, ' nt' if P['WONT'] else ''), tag='wo%d' % i)

    wo_loads(0, P['WOPRE'])
    e('v_and_b32 v%d, 3, v%d' % (T0, VC))
    e('v_mul_u32_u24 v%d, %d, v%d' % (V_ORD, LQ_STRIDE, T0))
    e('v_lshrrev_b32 v%d, 2, v%d' % (T0, VC))
    e('v_lshl_add_u32 v%d, v%d, 5, v%d' % (V_ORD, T0, V_ORD))
    e('v_lshl_add_u32 v%d, v%d, 2, v%d' % (V_ORD, VG, V_ORD))
    e('s_lshl_b32 s%d, s%d, 7' % (S_T0, S_J))
    e('v_add_u32 v%d, s%d, v%d' % (V_ORD, S_T0, V_ORD))
    e('s_mul_i32 s%d, s%d, 2560' % (S_T0, S_J))
    e('v_add_u32 v%d, s%d, v%d' % (V_LSW, S_T0, V_DWR))
    e('v_and_b32 v%d, 7, v%d' % (V_HG, V_L))
    e('v_lshrrev_b32 v%d, 3, v%d' % (T1, V_L))
    e('v_mul_u32_u24 v%d, 320, v%d' % (V_MBA, V_HG))
    e('v_lshl_add_u32 v%d, v%d, 4, v%d' % (V_MBA, T1, V_MBA))
    e('v_lshlrev_b32 v%d, 3, v%d' % (V_OA, T1))
    e('v_mul_u32_u24 v%d, 160, v%d' % (T2, V_HG))
    e('v_lshl_add_u32 v%d, v%d, 4, v%d' % (T2, T1, T2))
    e('s_mul_i32 s%d, s%d, 40' % (S_T3, S_H))
    e('v_mov_b32 v%d, 0' % V_Y)
    e('buffer_load_dwordx2 %s, v%d, %s, s%d offen%s' % (vr(V_XOR, 2), V_OA, srd(SRD_X), S_T3, SNT), tag='xo')
    e('buffer_load_ushort v%d, v%d, %s, 0 offen%s' % (V_B2, V_Y, srd(SRD_B2), SNT), tag='xo')
    e('s_waitcnt lgkmcnt(0)')
    stamp(6)
    e('s_barrier')
    e('s_and_b32 s%d, s%d, 7' % (S_T0, S_H))
    e('s_xor_b32 s%d, s%d, 7' % (S_T1, S_W))
    e('s_or_b32 s%d, s%d, s%d' % (S_T0, S_T0, S_T1))
    e('s_cmp_lg_u32 s%d, 0' % S_T0)
    e('s_cbranch_scc1 L_noready')
    e('s_lshl_b32 s%d, s%d, 5' % (S_T0, S_B))
    e('v_mov_b32 v%d, 1' % T0)
    e('v_mov_b32 v%d, 0' % T1)
    e('s_mov_b64 exec, 1')
    saved = list(a.vm)
    e('buffer_atomic_add v%d, v%d, %s, s%d offen sc1' % (T0, T1, srd(SRD_DBG), S_T0))
    a.vm = saved
    e('s_mov_b64 exec, -1')
    a.label('L_noready')
    GB = V_SA
    e('ds_read_b128 %s, v%d offset:%d' % (vr(GB, 4), T2, LG))
    e('ds_read_b128 %s, v%d offset:%d' % (vr(GB + 4, 4), T2, LG + 80))
    e('s_waitcnt lgkmcnt(0)')
    for k in range(4):
        e('v_add_f32 v%d, v%d, v%d' % (GB + k, GB + k, GB + 4 + k))

    def oct_allreduce(regs):
        for c in ('quad_perm:[1,0,3,2]', 'quad_perm:[2,3,0,1]', 'row_half_mirror'):
            for r in regs:
                e(dpp('v_add_f32', r, r, r, c))

    oct_allreduce([GB + k for k in range(4)])
    bf16r2(GB, GB + 1, GB, GB + 1, V_X)
    bf16r2(GB + 2, GB + 3, GB + 2, GB + 3, V_Y)
    a.wait_vm('xo')
    e('v_lshlrev_b32 v%d, 16, v%d' % (V_B2, V_B2))
    for k in range(4):
        e('v_add_f32 v%d, v%d, v%d' % (GB + k, GB + k, V_B2))
    bf16r2(GB, GB + 1, GB, GB + 1, V_X)
    bf16r2(GB + 2, GB + 3, GB + 2, GB + 3, V_Y)
    for k in range(4):
        e('v_mul_f32 v%d, s%d, v%d' % (GB + 4 + k, S_LOG2E, GB + k))
    for k in range(4):
        e('v_exp_f32 v%d, -v%d' % (GB + 4 + k, GB + 4 + k))
    for k in range(4):
        e('v_add_f32 v%d, 1.0, v%d' % (GB + 4 + k, GB + 4 + k))
    for k in range(4):
        e('v_rcp_f32 v%d, v%d' % (GB + 4 + k, GB + 4 + k))
    for k in range(4):
        e('v_mul_f32 v%d, v%d, v%d' % (GB + k, GB + k, GB + 4 + k))
    bf16r2(V_GF, V_GF + 1, GB, GB + 1, V_X)
    bf16r2(V_GF + 2, V_GF + 3, GB + 2, GB + 3, V_Y)
    e('v_lshlrev_b32 v%d, 16, v%d' % (V_XO, V_XOR))
    e('v_and_b32 v%d, 0xffff0000, v%d' % (V_XO + 1, V_XOR))
    e('v_lshlrev_b32 v%d, 16, v%d' % (V_XO + 2, V_XOR + 1))
    e('v_and_b32 v%d, 0xffff0000, v%d' % (V_XO + 3, V_XOR + 1))
    wo_loads(P['WOPRE'], 40)
    a.wait_vm('wo39')
    e('s_cmp_lg_u32 s%d, 7' % S_W)
    e('s_cbranch_scc1 L_rdy_ok')
    e('s_mov_b32 s%d, 0' % S_CNT)
    e('s_lshl_b32 s%d, s%d, 5' % (S_T1, S_B))
    e('v_mov_b32 v%d, 0' % V_Y)
    a.label('L_rdy')
    e('buffer_load_dword v%d, v%d, %s, s%d offen sc1' % (V_X, V_Y, srd(SRD_DBG), S_T1))
    e('s_waitcnt vmcnt(0)')
    e('v_readfirstlane_b32 s%d, v%d' % (S_T0, V_X))
    e('s_cmp_ge_u32 s%d, 4' % S_T0)
    e('s_cbranch_scc1 L_rdy_ok')
    e('s_add_u32 s%d, s%d, 1' % (S_CNT, S_CNT))
    e('s_cmp_ge_u32 s%d, 0x4000' % S_CNT)
    e('s_cbranch_scc1 L_rdy_ok')
    e('s_sleep 32')
    e('s_branch L_rdy')
    a.label('L_rdy_ok')
    a.vm = []
    e('s_setprio 2')
    stamp(8)
    e('s_barrier')
    stamp(9)
    O0, O1 = XQ + 1, XQ + 2
    assert O0 % 2 == 0
    e('ds_read2_b32 %s, v%d offset0:%d offset1:%d' % (vr(O0, 2), V_ORD, LQ // 4, LQ // 4 + 4))
    e('s_waitcnt lgkmcnt(0)')
    for c in ('quad_perm:[1,0,3,2]', 'quad_perm:[2,3,0,1]'):
        for r in (O0, O1):
            e(dpp('v_add_f32', r, r, r, c))
    e('v_cvt_pk_bf16_f32 v%d, v%d, v%d' % (O0, O0, O0))
    e('v_cvt_pk_bf16_f32 v%d, v%d, v%d' % (O1, O1, O1))
    build_A(0, O0, 0)
    for t in range(8):
        for seg in range(5):
            mfma(V_SA + 4 * seg, t & 1, V_W + 4 * (5 * t + seg), None if t == 0 else V_SA + 4 * seg)
            if seg == 0 and t + 1 < 8:
                build_A((t + 1) & 1, O0 + ((t + 1) & 1), 4 * ((t + 1) >> 1))
    e('s_mov_b32 exec_hi, 0')
    for seg in range(5):
        e('ds_write_b128 v%d, %s offset:%d' % (V_LSW, vr(V_SA + 4 * seg, 4), LS + seg * 512))
    e('s_mov_b32 exec_hi, -1')
    e('s_cmp_lg_u32 s%d, 7' % S_W)
    e('s_waitcnt lgkmcnt(0)')
    e('s_barrier')
    e('s_cbranch_scc1 L_hend')
    stamp(10)
    e('s_mov_b32 exec_hi, 0xff')
    PB = V_W

    def poll_loads():
        for i in range(4):
            e('buffer_load_dwordx4 %s, v%d, %s, s%d offen offset:%d sc1' % (vr(PB + 4 * i, 4), V_MBA, srd(SRD_MB), S_U1, 80 * i))

    e('s_mov_b32 s%d, 0' % S_CNT)
    a.label('L_poll')
    poll_loads()
    e('s_waitcnt vmcnt(0)')
    e('v_max3_u32 v%d, v%d, v%d, v%d' % (V_X, PB, PB + 1, PB + 2))
    e('v_max3_u32 v%d, v%d, v%d, v%d' % (V_Y, PB + 3, PB + 4, PB + 5))
    for k in range(6, 14, 4):
        e('v_max3_u32 v%d, v%d, v%d, v%d' % (V_X, V_X, PB + k, PB + k + 1))
        e('v_max3_u32 v%d, v%d, v%d, v%d' % (V_Y, V_Y, PB + k + 2, PB + k + 3))
    e('v_max3_u32 v%d, v%d, v%d, v%d' % (V_X, V_X, PB + 14, PB + 15))
    e('v_max_u32 v%d, v%d, v%d' % (V_X, V_X, V_Y))
    e('v_cmp_eq_u32 vcc, -1, v%d' % V_X)
    e('s_cbranch_vccz L_got')
    e('s_add_u32 s%d, s%d, 1' % (S_CNT, S_CNT))
    e('s_cmp_ge_u32 s%d, 0x4000' % S_CNT)
    e('s_cbranch_scc1 L_got')
    if P['POLL_SLEEP']:
        e('s_sleep %d' % P['POLL_SLEEP'])
    e('s_branch L_poll')
    a.label('L_got')
    stamp(12)
    if P['DEBUG']:
        e('v_writelane_b32 v0, s%d, 14' % S_CNT)
    for i in (0, 2):
        for k in range(4):
            e('v_add_f32 v%d, v%d, v%d' % (PB + 4 * i + k, PB + 4 * i + k, PB + 4 * i + 4 + k))
    for k in range(4):
        e('v_add_f32 v%d, v%d, v%d' % (PB + k, PB + k, PB + 8 + k))
    oct_allreduce([PB + k for k in range(4)])
    bf16r2(PB, PB + 1, PB, PB + 1, V_X)
    bf16r2(PB + 2, PB + 3, PB + 2, PB + 3, V_Y)
    for k in range(4):
        e('v_mul_f32 v%d, v%d, v%d' % (PB + k, PB + k, V_GF + k))
    bf16r2(PB, PB + 1, PB, PB + 1, V_X)
    bf16r2(PB + 2, PB + 3, PB + 2, PB + 3, V_Y)
    for k in range(4):
        e('v_add_f32 v%d, v%d, v%d' % (PB + k, PB + k, V_XO + k))
    e('v_cvt_pk_bf16_f32 v%d, v%d, v%d' % (PB, PB, PB + 1))
    e('v_cvt_pk_bf16_f32 v%d, v%d, v%d' % (PB + 1, PB + 2, PB + 3))
    e('v_cmp_eq_u32 vcc, 0, v%d' % V_HG)
    e('s_and_b64 exec, exec, vcc')
    e('buffer_store_dwordx2 %s, v%d, %s, s%d offen' % (vr(PB, 2), V_OA, srd(SRD_OUT), S_T3))
    stamp(13)
    a.label('L_hend')
    stamp_out()
    a.label('L_end', flush=False)
    e('s_endpgm')
    a.lines = a.lines[:cut1] + a.lines[cut2:] + a.lines[cut1:cut2]

    a.raw('.section .rodata,"a"')
    a.raw('.p2align 6')
    a.raw('.amdhsa_kernel %s_kernel' % NAME)
    a.raw('  .amdhsa_next_free_vgpr 256')
    a.raw('  .amdhsa_next_free_sgpr %d' % (100 if P['DEBUG'] else 98))
    a.raw('  .amdhsa_accum_offset 256')
    a.raw('  .amdhsa_group_segment_fixed_size 0')
    a.raw('  .amdhsa_kernarg_size 104')
    a.raw('  .amdhsa_user_sgpr_count 2')
    a.raw('  .amdhsa_user_sgpr_kernarg_segment_ptr 1')
    a.raw('  .amdhsa_system_sgpr_workgroup_id_x 1')
    a.raw('  .amdhsa_float_denorm_mode_32 3')
    a.raw('.end_amdhsa_kernel')
    return a


if __name__ == '__main__':
    out = sys.argv[1] if len(sys.argv) > 1 else 'cdna_kernels/%s.s' % NAME
    kw = {}
    for x in sys.argv[2:]:
        k, v = x.split('=')
        kw[k] = int(v)
    a = gen(**kw)
    open(out, 'w').write(a.text())
    print('wrote', out, 'lines', len(a.lines), 'nop states', a.nops)
```

```python
import struct
import sys
import os
sys.path.insert(0, os.path.dirname(os.path.abspath(__file__)))
from asmlib import Asm

NAME = 'recurrent_scan__gqa_block_cached__mixer_token_mlp__decode'


def f2u(x):
    return struct.unpack('<I', struct.pack('<f', x))[0]


def hexf(x):
    return '0x%08x' % f2u(x)


def br4(j):
    return ((j & 1) << 3) | ((j & 2) << 1) | ((j & 4) >> 1) | ((j & 8) >> 3)


DEF = dict(
    H=4,
    NS=48,
    WN=10,
    WP=5,
    FAST0=12,
    WQ0=7,
    WQW=7,
    WOW=3,
    WONT=1,
    KNT=1,
    VNT=1,
    SNT=1,
    NP1=32,
    SMI=5,
    HB=2,
    WQNT=1,
    WOPRE=15,
    POLL_SLEEP=2,
    PRIO=1,
    DEBUG=0,
)

LQ = 0
LQ_STRIDE = 528
LML = 2176
LG = 2240
LS = 3584
LDS_BYTES = LS + 4 * 2560

MB_STRIDE = 2560

S_W = 3
SRD_X, SRD_K, SRD_V, SRD_WQ, SRD_WO = 4, 8, 12, 16, 20
SRD_W1, SRD_B1, SRD_W2, SRD_B2, SRD_OUT, SRD_DBG, SRD_MB = 24, 28, 32, 36, 40, 44, 48
S_B, S_H, S_T0, S_T1 = 52, 53, 54, 55
S_MB1, S_MB0 = 56, 58
S_OFF, S_T2, S_T3, S_T4 = 60, 61, 62, 63
S_HV = 64
S_C1, S_LOG2E, S_SCALE, S_R640 = 90, 91, 92, 93
S_U0, S_U1, S_CNT, S_J = 94, 95, 96, 97

V_L = 1
V_OFF = 2
V_OFF2 = 3
V_M = 4
V_Q = 8
V_ACC = 12
V_A = 16
V_X, V_Y = 50, 51
V_DWR = 52


def srd(n):
    return 's[%d:%d]' % (n, n + 3)


def vr(n, k):
    return 'v[%d:%d]' % (n, n + k - 1)


def gen(**kw):
    P = dict(DEF)
    P.update(kw)
    H = P['H']
    SNT = ' nt' if P['SNT'] else ''
    a = Asm()
    e = a.e

    def bf16r(dst, src):
        e('v_cvt_pk_bf16_f32 v%d, v%d, v%d' % (dst, src, src))
        e('v_and_b32 v%d, 0xffff0000, v%d' % (dst, dst))

    def bf16r2(d0, d1, s0, s1, tmp):
        e('v_cvt_pk_bf16_f32 v%d, v%d, v%d' % (tmp, s0, s1))
        e('v_lshlrev_b32 v%d, 16, v%d' % (d0, tmp))
        e('v_and_b32 v%d, 0xffff0000, v%d' % (d1, tmp))

    def dpp(op, d, s0, s1, ctrl, rm='0xf', bm='0xf'):
        return '%s_dpp v%d, v%d, v%d %s row_mask:%s bank_mask:%s' % (op, d, s0, s1, ctrl, rm, bm)

    def row_allreduce(op, regs):
        for sh in (8, 4, 2, 1):
            for r in regs:
                e(dpp(op, r, r, r, 'row_ror:%d' % sh))

    def wave_reduce_to_sgpr(op, r, sdst):
        row_allreduce(op, [r])
        e(dpp(op, r, r, r, 'row_bcast:15', rm='0xa'))
        e(dpp(op, r, r, r, 'row_bcast:31', rm='0xc'))
        e('v_readlane_b32 s%d, v%d, 63' % (sdst, r))

    def stamp(k):
        if not P['DEBUG']:
            return
        e('s_memrealtime s[98:99]')
        e('s_waitcnt lgkmcnt(0)')
        e('v_writelane_b32 v0, s98, %d' % k)

    def stamp_out():
        if not P['DEBUG']:
            return
        e('s_mov_b64 exec, -1')
        e('s_add_u32 s64, s88, 0x100000')
        e('s_addc_u32 s65, s89, 0')
        e('s_mov_b32 s66, 0x40000')
        e('s_mov_b32 s67, 0x00020000')
        e('s_lshl_b32 s68, s2, 4')
        e('s_add_u32 s68, s68, s%d' % S_W)
        e('s_lshl_b32 s68, s68, 6')
        e('v_lshlrev_b32 v%d, 2, v%d' % (V_L, V_L))
        e('s_mov_b64 exec, 0xffff')
        saved = list(a.vm)
        e('buffer_store_dword v0, v%d, s[64:67], s68 offen' % V_L)
        a.vm = saved

    def base(n, p, off=None):
        if off is None:
            e('s_mov_b64 s[%d:%d], s[%d:%d]' % (n, n + 1, p, p + 1))
        else:
            e('s_add_u32 s%d, s%d, s%d' % (n, p, off))
            e('s_addc_u32 s%d, s%d, 0' % (n + 1, p + 1))

    def srd_tail(n, sz):
        e('s_mov_b32 s%d, %d' % (n + 2, sz))
        e('s_mov_b32 s%d, 0x00020000' % (n + 3))

    def merge_ops(level, dst, x0, x1, tx, ty):
        if level == 1:
            return [dpp('v_add_f32', dst, x0, x0, 'row_mirror', bm='0x3'),
                    dpp('v_add_f32', dst, x1, x1, 'row_mirror', bm='0xc')]
        if level == 2:
            return [dpp('v_add_f32', dst, x0, x0, 'row_half_mirror', bm='0x5'),
                    dpp('v_add_f32', dst, x1, x1, 'row_half_mirror', bm='0xa')]
        m = S_MB1 if level == 3 else S_MB0
        qp = 'quad_perm:[2,3,0,1]' if level == 3 else 'quad_perm:[1,0,3,2]'
        return ['v_cndmask_b32 v%d, v%d, v%d, s[%d:%d]' % (tx, x0, x1, m, m + 1),
                'v_cndmask_b32 v%d, v%d, v%d, s[%d:%d]' % (ty, x1, x0, m, m + 1),
                dpp('v_add_f32', dst, ty, tx, qp)]

    def build_A(aset, preg, lane):
        for r in range(4):
            e(dpp('v_and_b32', V_A + 4 * aset + r, preg, V_M + r, 'row_newbcast:%d' % lane))

    def mfma(d, aset, b, c):
        e('v_mfma_f32_16x16x32_bf16 %s, %s, %s, %s' % (vr(d, 4), vr(V_A + 4 * aset, 4), vr(b, 4),
                                                   '0' if c is None else vr(c, 4)))

    def make_masks(G, C):
        e('s_mov_b32 s%d, 0xcccccccc' % S_MB1)
        e('s_mov_b32 s%d, 0xcccccccc' % (S_MB1 + 1))
        e('s_mov_b32 s%d, 0xaaaaaaaa' % S_MB0)
        e('s_mov_b32 s%d, 0xaaaaaaaa' % (S_MB0 + 1))
        e('v_mov_b32 v%d, 0xffff' % V_X)
        e('v_mov_b32 v%d, 0xffff0000' % V_Y)
        e('v_cndmask_b32 v%d, v%d, v%d, s[%d:%d]' % (V_X, V_X, V_Y, S_MB0, S_MB0 + 1))
        e('v_lshrrev_b32 v%d, 1, v%d' % (V_Y, C))
        for r in range(4):
            e('v_cmp_eq_u32 vcc, %d, v%d' % (r, V_Y))
            e('v_cndmask_b32 v%d, 0, v%d, vcc' % (V_M + r, V_X))
        e('v_lshlrev_b32 v%d, 5, v%d' % (V_DWR, C))
        e('v_lshl_add_u32 v%d, v%d, 4, v%d' % (V_DWR, G, V_DWR))

    kbeta = 0.7978845608028654
    kkappa = 0.044715
    log2e = 1.4426950408889634
    c0 = -2.0 * kbeta * log2e
    c1 = c0 * kkappa

    a.raw('; @launch grid=(256,1,1) block=(512,1,1) lds=%d' % LDS_BYTES)
    a.raw('.amdgcn_target "amdgcn-amd-amdhsa--gfx950"')
    a.raw('.text')
    a.raw('.globl %s_kernel' % NAME)
    a.raw('.p2align 8')
    a.raw('.type %s_kernel,@function' % NAME)
    a.raw('%s_kernel:' % NAME)

    e('s_load_dwordx16 s[64:79], s[0:1], 0')
    e('s_load_dwordx8 s[80:87], s[0:1], 64')
    e('s_load_dwordx2 s[88:89], s[0:1], 96')
    e('s_cmp_ge_u32 s2, 256')
    e('s_cbranch_scc1 L_end')
    e('v_lshrrev_b32 v%d, 6, v0' % V_OFF)
    e('v_and_b32 v%d, 63, v0' % V_L)
    e('v_readfirstlane_b32 s%d, v%d' % (S_W, V_OFF))
    HB = P['HB']
    e('s_and_b32 s%d, s2, 7' % S_T0)
    e('s_lshr_b32 s%d, s2, 3' % S_T1)
    e('s_and_b32 s%d, s%d, %d' % (S_H, S_T0, (32 >> HB) - 1))
    e('s_lshl_b32 s%d, s%d, %d' % (S_H, S_H, HB))
    e('s_and_b32 s%d, s%d, %d' % (S_B, S_T1, (1 << HB) - 1))
    e('s_or_b32 s%d, s%d, s%d' % (S_H, S_H, S_B))
    e('s_lshr_b32 s%d, s%d, %d' % (S_B, S_T1, HB))
    if HB > 2:
        e('s_andn2_b32 s%d, s%d, %d' % (S_T0, S_T0, (32 >> HB) - 1))
        e('s_add_u32 s%d, s%d, s%d' % (S_B, S_B, S_T0))
    e('s_mul_i32 s%d, s%d, %d' % (S_U0, S_B, 32 * MB_STRIDE))
    srd_tail(SRD_MB, 32 * MB_STRIDE)
    srd_tail(SRD_DBG, 256)
    e('s_cmp_ge_u32 s%d, 4' % S_W)
    e('s_cbranch_scc1 L_helper')

    V_S = 24
    V_T = 40
    V_R1, V_R2, V_R3 = 44, 46, 48
    V_RDY = 53
    V_RDA = 54
    V_MBO = 55
    V_G, V_C = 56, 57
    V_MX = 58
    V_KB = 64
    NS, WN, WP = P['NS'], P['WN'], P['WP']
    assert V_KB + 4 * NS <= 256
    NL = 512

    if P['PRIO']:
        e('s_setprio %d' % P['PRIO'])
    e('s_lshl_b32 s%d, s%d, 5' % (S_T2, S_B))
    e('s_add_u32 s%d, s%d, s%d' % (S_T2, S_T2, S_H))
    e('s_lshl_b32 s%d, s%d, 20' % (S_T2, S_T2))
    srd_tail(SRD_K, 1 << 20)
    srd_tail(SRD_V, 1 << 20)
    e('s_mul_i32 s%d, s%d, %d' % (S_T1, S_W, H * 1024))
    e('v_lshlrev_b32 v%d, 4, v%d' % (V_OFF, V_L))
    e('v_add_u32 v%d, s%d, v%d' % (V_OFF, S_T1, V_OFF))
    e('s_waitcnt lgkmcnt(0)')
    base(SRD_K, 66, S_T2)

    st = {'soff': None, 'next': 0}

    def issue(throttle=None):
        n = st['next']
        if n >= NL:
            return
        if throttle is not None and n - throttle >= 0:
            a.wait_vm('kv%d' % (n - throttle))
        t, m = divmod(n, 256)
        r, i = divmod(m, H)
        so = r * 4 * H * 1024 + (i // 4) * 4096
        if st['soff'] != so:
            e('s_mov_b32 s%d, %d' % (S_OFF, so))
            st['soff'] = so
        e('buffer_load_dwordx4 %s, v%d, %s, s%d offen offset:%d%s' %
          (vr(V_KB + 4 * (n % NS), 4), V_OFF, srd(SRD_V if t else SRD_K), S_OFF, (i % 4) * 1024,
           ' nt' if (P['VNT'] if t else P['KNT']) else ''), tag='kv%d' % n)
        st['next'] = n + 1

    for n in range(WP):
        issue()
    stamp(0)
    if P['DEBUG']:
        e('s_getreg_b32 s98, hwreg(HW_REG_XCC_ID)')
        e('v_writelane_b32 v0, s98, 15')
    base(SRD_V, 68, S_T2)
    base(SRD_MB, 88, S_U0)
    e('s_mov_b32 s%d, %s' % (S_LOG2E, hexf(log2e)))
    e('s_mov_b32 s%d, %s' % (S_SCALE, hexf(128 ** -0.5)))
    e('v_lshrrev_b32 v%d, 4, v%d' % (V_G, V_L))
    e('v_and_b32 v%d, 15, v%d' % (V_C, V_L))
    make_masks(V_G, V_C)
    e('s_mul_i32 s%d, s%d, %d' % (S_T0, S_W, LQ_STRIDE))
    e('v_add_u32 v%d, s%d, v%d' % (V_DWR, S_T0, V_DWR))
    e('s_lshl_b32 s%d, s%d, 6' % (S_T0, S_W))
    e('v_add_u32 v%d, s%d, v%d' % (V_X, S_T0, V_L))
    e('v_lshlrev_b32 v%d, 4, v%d' % (V_RDA, V_X))
    e('v_mul_u32_u24 v%d, 52429, v%d' % (V_MBO, V_X))
    e('v_lshrrev_b32 v%d, 18, v%d' % (V_MBO, V_MBO))
    e('v_mul_u32_u24 v%d, %d, v%d' % (V_MBO, MB_STRIDE - 80, V_MBO))
    e('v_add_u32 v%d, v%d, v%d' % (V_MBO, V_MBO, V_RDA))
    e('s_mul_i32 s%d, s%d, 80' % (S_U0, S_H))
    e('v_lshlrev_b32 v%d, 5, v%d' % (V_OFF2, V_C))
    while st['next'] < NS:
        issue(throttle=WP if st['next'] < P['NP1'] else WN)
    stamp(1)
    e('s_branch L_smain')
    cut1 = len(a.lines)
    a.label('L_smain', flush=False)
    e('s_barrier')
    qb = [V_S, V_S + 4, V_S + 8, V_S + 12, V_ACC, V_A, V_A + 4, V_T]
    for pw in range(4):
        e('ds_read_b128 %s, v%d offset:%d' % (vr(qb[2 * pw], 4), V_OFF2, LQ + pw * LQ_STRIDE))
        e('ds_read_b128 %s, v%d offset:%d' % (vr(qb[2 * pw + 1], 4), V_OFF2, LQ + pw * LQ_STRIDE + 16))
    e('s_waitcnt lgkmcnt(4)')
    for k in range(4):
        e('v_add_f32 v%d, v%d, v%d' % (qb[0] + k, qb[0] + k, qb[2] + k))
        e('v_add_f32 v%d, v%d, v%d' % (qb[1] + k, qb[1] + k, qb[3] + k))
    e('s_waitcnt lgkmcnt(0)')
    for k in range(4):
        e('v_add_f32 v%d, v%d, v%d' % (qb[4] + k, qb[4] + k, qb[6] + k))
        e('v_add_f32 v%d, v%d, v%d' % (qb[5] + k, qb[5] + k, qb[7] + k))
    for k in range(4):
        e('v_add_f32 v%d, v%d, v%d' % (qb[0] + k, qb[0] + k, qb[4] + k))
        e('v_add_f32 v%d, v%d, v%d' % (qb[1] + k, qb[1] + k, qb[5] + k))
    for k in range(4):
        e('v_cvt_pk_bf16_f32 v%d, v%d, v%d' % (V_Q + k, qb[k >> 1] + 2 * (k & 1), qb[k >> 1] + 2 * (k & 1) + 1))
    stamp(5)

    def after_step(n):
        dist = st['next'] - (n + 1)
        if dist >= WN:
            if n >= P['FAST0'] and (n & 1):
                return
            issue(throttle=WN)
        else:
            issue()

    kpend = []
    for n in range(256):
        a.wait_vm('kv%d' % n)
        kb = V_KB + 4 * (n % NS)
        T = V_T + (n & 3)
        for k in range(4):
            e('v_dot2_f32_bf16 v%d, v%d, v%d, %s' % (T, kb + k, V_Q + k, '0' if k == 0 else 'v%d' % T))
        after_step(n)
        for op in kpend:
            e(op)
        kpend = []
        j = n & 15
        if j & 1:
            k1 = (j >> 1) & 1
            kpend += merge_ops(1, V_R1 + k1, V_T + ((n - 1) & 3), V_T + (n & 3), V_X, V_Y)
            if j & 2:
                k2 = (j >> 2) & 1
                kpend += merge_ops(2, V_R2 + k2, V_R1, V_R1 + 1, V_X, V_Y)
                if j & 4:
                    k3 = (j >> 3) & 1
                    kpend += merge_ops(3, V_R3 + k3, V_R2, V_R2 + 1, V_X, V_Y)
                    if j & 8:
                        s = V_S + (n >> 4)
                        kpend += merge_ops(4, s, V_R3, V_R3 + 1, V_X, V_Y)
                        kpend += ['v_cvt_pk_bf16_f32 v%d, v%d, v%d' % (s, s, s),
                                  'v_and_b32 v%d, 0xffff0000, v%d' % (s, s),
                                  'v_mul_f32 v%d, s%d, v%d' % (s, S_SCALE, s),
                                  'v_cvt_pk_bf16_f32 v%d, v%d, v%d' % (s, s, s),
                                  'v_and_b32 v%d, 0xffff0000, v%d' % (s, s)]
                        if n >> 4 == 0:
                            kpend += ['v_mov_b32 v%d, v%d' % (V_MX, s)]
                        else:
                            kpend += ['v_max_f32 v%d, v%d, v%d' % (V_MX, V_MX, s)]
    for op in kpend:
        e(op)
    stamp(6)
    smi = [P['SMI']]

    def sm_issue():
        if smi[0] > 0:
            smi[0] -= 1
            issue(throttle=WN)

    wave_reduce_to_sgpr('v_max_f32', V_MX, S_T0)
    e('v_mov_b32 v%d, s%d' % (V_MX, S_T0))
    e('v_mul_f32 v%d, s%d, v%d' % (V_X, S_LOG2E, V_MX))
    sm_issue()
    for k in range(16):
        e('v_fma_f32 v%d, v%d, s%d, -v%d' % (V_T + (k & 3), V_S + k, S_LOG2E, V_X))
        e('v_exp_f32 v%d, v%d' % (V_T + (k & 3), V_T + (k & 3)))
        if k == 1:
            e('v_mov_b32 v%d, v%d' % (V_MX + 1, V_T))
        elif k >= 2:
            e('v_add_f32 v%d, v%d, v%d' % (V_MX + 1, V_MX + 1, V_T + ((k - 1) & 3)))
    e('v_add_f32 v%d, v%d, v%d' % (V_MX + 1, V_MX + 1, V_T + 3))
    sm_issue()
    wave_reduce_to_sgpr('v_add_f32', V_MX + 1, S_T1)
    e('s_lshl_b32 s%d, s%d, 3' % (S_T0, S_W))
    e('v_mov_b32 v%d, s%d' % (V_MX + 1, S_T1))
    e('v_mov_b32 v%d, s%d' % (V_X, S_T0))
    e('s_mov_b64 exec, 1')
    e('ds_write_b64 v%d, %s offset:%d' % (V_X, vr(V_MX, 2), LML))
    e('s_mov_b64 exec, -1')
    e('v_and_b32 v%d, 3, v%d' % (V_X, V_L))
    e('v_lshlrev_b32 v%d, 3, v%d' % (V_X, V_X))
    sm_issue()
    sm_issue()
    e('s_waitcnt lgkmcnt(0)')
    e('s_barrier')
    e('ds_read_b64 %s, v%d offset:%d' % (vr(V_R1, 2), V_X, LML))
    while smi[0] > 0:
        sm_issue()
    e('s_waitcnt lgkmcnt(0)')
    e(dpp('v_max_f32', V_R2, V_R1, V_R1, 'quad_perm:[1,0,3,2]'))
    e(dpp('v_max_f32', V_R2, V_R2, V_R2, 'quad_perm:[2,3,0,1]'))
    e('v_sub_f32 v%d, v%d, v%d' % (V_R1, V_R1, V_R2))
    e('v_mul_f32 v%d, s%d, v%d' % (V_R1, S_LOG2E, V_R1))
    e('v_exp_f32 v%d, v%d' % (V_R1, V_R1))
    e('v_mul_f32 v%d, s%d, v%d' % (V_X, S_LOG2E, V_R2))
    e('v_mul_f32 v%d, v%d, v%d' % (V_R1, V_R1, V_R1 + 1))
    e(dpp('v_add_f32', V_R1, V_R1, V_R1, 'quad_perm:[1,0,3,2]'))
    e(dpp('v_add_f32', V_R1, V_R1, V_R1, 'quad_perm:[2,3,0,1]'))
    e('v_rcp_f32 v%d, v%d' % (V_R1, V_R1))

    def make_P(k):
        s = V_S + k
        e('v_fma_f32 v%d, v%d, s%d, -v%d' % (s, s, S_LOG2E, V_X))
        e('v_exp_f32 v%d, v%d' % (s, s))
        e('v_mul_f32 v%d, v%d, v%d' % (s, s, V_R1))
        e('v_cvt_pk_bf16_f32 v%d, v%d, v%d' % (s, s, s))

    make_P(0)
    build_A(0, V_S, br4(0))
    stamp(7)
    for m in range(256):
        n = 256 + m
        a.wait_vm('kv%d' % n)
        vb = V_KB + 4 * (n % NS)
        mfma(V_ACC, m & 1, vb, None if m == 0 else V_ACC)
        if m + 1 < 256:
            build_A((m + 1) & 1, V_S + ((m + 1) >> 4), br4((m + 1) & 15))
        after_step(n)
        if (m & 15) == 4 and (m >> 4) + 1 < 16:
            make_P((m >> 4) + 1)
    stamp(8)
    e('s_mov_b32 exec_hi, 0')
    e('ds_write_b128 v%d, %s offset:%d' % (V_DWR, vr(V_ACC, 4), LQ))
    e('s_mov_b32 exec_hi, -1')
    e('s_waitcnt lgkmcnt(0)')
    e('s_barrier')
    e('s_cmp_eq_u32 s%d, 2' % S_W)
    e('s_cselect_b32 s%d, 0, -1' % S_T1)
    e('s_cmp_eq_u32 s%d, 3' % S_W)
    e('s_barrier')
    e('s_cbranch_scc1 L_send')
    stamp(10)
    e('s_mov_b32 exec_hi, s%d' % S_T1)
    RB = V_KB
    for k in range(4):
        e('ds_read_b128 %s, v%d offset:%d' % (vr(RB + 4 * k, 4), V_RDA, LS + k * 2560))
    e('s_waitcnt lgkmcnt(2)')
    for k in range(4):
        e('v_add_f32 v%d, v%d, v%d' % (RB + k, RB + k, RB + 4 + k))
    e('s_waitcnt lgkmcnt(0)')
    for k in range(4):
        e('v_add_f32 v%d, v%d, v%d' % (RB + 8 + k, RB + 8 + k, RB + 12 + k))
    for k in range(4):
        e('v_add_f32 v%d, v%d, v%d' % (RB + k, RB + k, RB + 8 + k))
    for k in range(4):
        e('v_min_u32 v%d, -2, v%d' % (RB + k, RB + k))
    e('buffer_store_dwordx4 %s, v%d, %s, s%d offen sc1' % (vr(RB, 4), V_MBO, srd(SRD_MB), S_U0))
    stamp(11)
    a.label('L_send')
    stamp_out()
    e('s_endpgm')

    cut2 = len(a.lines)
    a.label('L_helper', flush=False)
    a.hist = []
    a.vm = []
    XR = 24
    XF = 29
    T0, T1, T2, MEAN, SD, RINV = 39, 40, 41, 42, 43, 44
    XQ = 45
    XG = 48
    VG, VC = 53, 54
    V_GF = 56
    V_XO = 60
    V_OA, V_MBA, V_ORD, V_LSW, V_HG = 64, 65, 66, 67, 68
    V_B2 = 69
    V_XOR = 70
    V_SA = 72
    V_W = 96

    e('s_sub_u32 s%d, s%d, 4' % (S_J, S_W))
    e('s_mul_i32 s%d, s%d, 1280' % (S_OFF, S_B))
    e('s_lshl_b32 s%d, s%d, 8' % (S_T3, S_H))
    srd_tail(SRD_X, 1280)
    e('s_sub_u32 s%d, %d, s%d' % (SRD_WQ + 2, 640 * 8192, S_T3))
    e('s_mov_b32 s%d, 0x00020000' % (SRD_WQ + 3))
    e('v_lshrrev_b32 v%d, 4, v%d' % (VG, V_L))
    e('v_and_b32 v%d, 15, v%d' % (VC, V_L))
    e('v_lshlrev_b32 v%d, 2, v%d' % (V_X, V_L))
    e('s_mul_i32 s%d, s%d, 160' % (S_T0, S_J))
    e('s_mul_i32 s%d, s%d, 20' % (S_T1, S_B))
    e('s_add_u32 s%d, s%d, s%d' % (S_T4, S_T0, S_T1))
    e('v_lshlrev_b32 v%d, 2, v%d' % (V_Y, VC))
    e('v_add_u32 v%d, s%d, v%d' % (V_Y, S_T4, V_Y))
    for k in range(3):
        e('v_add_u32 v%d, %d, v%d' % (XQ + k, 64 * k, V_Y))
        e('v_subrev_u32 v%d, 640, v%d' % (T0, XQ + k))
        e('v_min_u32 v%d, v%d, v%d' % (XQ + k, XQ + k, T0))
        e('v_add_lshl_u32 v%d, v%d, v%d, 1' % (XQ + k, XQ + k, VG))
    e('v_lshlrev_b32 v%d, 13, v%d' % (V_OFF, VG))
    e('v_lshl_add_u32 v%d, v%d, 4, v%d' % (V_OFF, VC, V_OFF))
    e('v_lshlrev_b32 v%d, 1, v%d' % (XG, V_L))
    e('s_mul_i32 s%d, s%d, 40' % (S_T0, S_H))
    e('s_lshl_b32 s%d, s%d, 13' % (S_T4, S_T4))
    e('s_waitcnt lgkmcnt(0)')
    base(SRD_X, 64, S_OFF)
    base(SRD_WQ, 70, S_T3)
    for i in range(5):
        e('buffer_load_dword v%d, v%d, %s, 0 offen offset:%d%s' % (XR + i, V_X, srd(SRD_X), 256 * i, SNT), tag='x')
    for k in range(3):
        e('buffer_load_ushort v%d, v%d, %s, 0 offen%s' % (XQ + k, XQ + k, srd(SRD_X), SNT), tag='x')
    e('buffer_load_ushort v%d, v%d, %s, s%d offen%s' % (XG, XG, srd(SRD_X), S_T0, SNT), tag='x')
    wq = {'next': 0}

    def issue_wq():
        t = wq['next']
        if t >= 40:
            return
        e('buffer_load_dwordx4 %s, v%d, %s, s%d offen%s' % (vr(V_W + 4 * t, 4), V_OFF, srd(SRD_WQ), S_T4, ' nt' if P['WQNT'] else ''), tag='wq%d' % t)
        if t < 39:
            e('s_add_u32 s%d, s%d, %d' % (S_T4, S_T4, 4 * 8192))
            e('s_cmp_ge_u32 s%d, %d' % (S_T4, 640 * 8192))
            e('s_cselect_b32 s%d, 0, s%d' % (S_T4, S_T4))
        wq['next'] = t + 1

    for t in range(P['WQ0']):
        issue_wq()
    stamp(0)
    if P['DEBUG']:
        e('s_getreg_b32 s98, hwreg(HW_REG_XCC_ID)')
        e('v_writelane_b32 v0, s98, 15')
    base(SRD_MB, 88, S_U0)
    e('s_mul_i32 s%d, s%d, %d' % (S_U1, S_H, MB_STRIDE))
    base(SRD_OUT, 84, S_OFF)
    srd_tail(SRD_OUT, 1280)
    e('s_mul_i32 s%d, s%d, 163840' % (S_T2, S_H))
    base(SRD_WO, 72, S_T2)
    srd_tail(SRD_WO, 163840)
    for n, p in ((SRD_W1, 76), (SRD_B1, 78), (SRD_W2, 80)):
        base(n, p)
        srd_tail(n, 3456)
    base(SRD_B2, 82)
    srd_tail(SRD_B2, 2)
    base(SRD_DBG, 86)
    e('s_mov_b32 s%d, %s' % (S_C1, hexf(c1)))
    e('s_mov_b32 s%d, %s' % (S_LOG2E, hexf(log2e)))
    e('s_mov_b32 s%d, %s' % (S_R640, hexf(1.0 / 640)))
    make_masks(VG, VC)

    def ln_stats(src):
        e('v_add_f32 v%d, v%d, v%d' % (T0, src, src + 1))
        e('v_add_f32 v%d, v%d, v%d' % (T1, src + 2, src + 3))
        for i in range(4, 10, 2):
            e('v_add_f32 v%d, v%d, v%d' % (T0, T0, src + i))
            e('v_add_f32 v%d, v%d, v%d' % (T1, T1, src + i + 1))
        e('v_add_f32 v%d, v%d, v%d' % (T0, T0, T1))
        wave_reduce_to_sgpr('v_add_f32', T0, S_T0)
        e('v_mov_b32 v%d, s%d' % (MEAN, S_R640))
        e('v_mul_f32 v%d, s%d, v%d' % (MEAN, S_T0, MEAN))
        e('v_sub_f32 v%d, v%d, v%d' % (T2, src, MEAN))
        e('v_mul_f32 v%d, v%d, v%d' % (T0, T2, T2))
        e('v_sub_f32 v%d, v%d, v%d' % (T2, src + 1, MEAN))
        e('v_mul_f32 v%d, v%d, v%d' % (T1, T2, T2))
        for i in range(2, 10):
            e('v_sub_f32 v%d, v%d, v%d' % (T2, src + i, MEAN))
            e('v_fmac_f32 v%d, v%d, v%d' % (T0 if i % 2 == 0 else T1, T2, T2))
        e('v_add_f32 v%d, v%d, v%d' % (T0, T0, T1))
        wave_reduce_to_sgpr('v_add_f32', T0, S_T0)
        e('v_mov_b32 v%d, s%d' % (SD, S_R640))
        e('v_mul_f32 v%d, s%d, v%d' % (SD, S_T0, SD))
        bf16r2(MEAN, SD, MEAN, SD, T0)
        e('v_add_f32 v%d, %s, v%d' % (SD, hexf(1e-5), SD))
        bf16r(SD, SD)
        e('v_sqrt_f32 v%d, v%d' % (SD, SD))
        bf16r(SD, SD)
        e('v_rcp_f32 v%d, v%d' % (RINV, SD))

    def ln_apply(pairs):
        for (r0, r1) in pairs:
            e('v_sub_f32 v%d, v%d, v%d' % (r0, r0, MEAN))
            e('v_sub_f32 v%d, v%d, v%d' % (r1, r1, MEAN))
            bf16r2(r0, r1, r0, r1, T2)
            e('v_mul_f32 v%d, v%d, v%d' % (T0, r0, RINV))
            e('v_mul_f32 v%d, v%d, v%d' % (T1, r1, RINV))
            e('v_fma_f32 v%d, -v%d, v%d, v%d' % (r0, T0, SD, r0))
            e('v_fma_f32 v%d, -v%d, v%d, v%d' % (r1, T1, SD, r1))
            e('v_fmac_f32 v%d, v%d, v%d' % (T0, r0, RINV))
            e('v_fmac_f32 v%d, v%d, v%d' % (T1, r1, RINV))
            bf16r2(r0, r1, T0, T1, T2)

    stamp(1)
    a.wait_vm('x')
    stamp(2)
    for i in range(5):
        e('v_lshlrev_b32 v%d, 16, v%d' % (XF + 2 * i, XR + i))
        e('v_and_b32 v%d, 0xffff0000, v%d' % (XF + 2 * i + 1, XR + i))
    for r in (XQ, XQ + 1, XQ + 2, XG):
        e('v_lshlrev_b32 v%d, 16, v%d' % (r, r))
    ln_stats(XF)
    ln_apply([(XQ, XQ + 1), (XQ + 2, XG)])
    for k in range(3):
        e('v_cvt_pk_bf16_f32 v%d, v%d, v%d' % (XQ + k, XQ + k, XQ + k))
    stamp(3)
    build_A(0, XQ, 0)
    for t in range(40):
        if t + 1 < 40:
            build_A((t + 1) & 1, XQ + ((t + 1) >> 4), (t + 1) & 15)
        a.wait_vm('wq%d' % t)
        mfma(V_ACC, t & 1, V_W + 4 * t, None if t == 0 else V_ACC)
        while wq['next'] < min(40, t + 1 + P['WQW']):
            issue_wq()
    e('s_mul_i32 s%d, s%d, %d' % (S_T0, S_J, LQ_STRIDE))
    e('v_add_u32 v%d, s%d, v%d' % (V_X, S_T0, V_DWR))
    e('s_mov_b32 exec_hi, 0')
    e('ds_write_b128 v%d, %s offset:%d' % (V_X, vr(V_ACC, 4), LQ))
    e('s_mov_b32 exec_hi, -1')
    e('s_waitcnt lgkmcnt(0)')
    stamp(4)
    e('s_barrier')
    GR = V_W
    e('v_lshlrev_b32 v%d, 2, v%d' % (V_OFF, V_L))
    e('s_lshl_b32 s%d, s%d, 8' % (S_T4, S_J))

    def gate_loads():
        e('buffer_load_dword v%d, v%d, %s, s%d offen%s' % (GR, V_OFF, srd(SRD_W1), S_T4, SNT))
        e('buffer_load_dword v%d, v%d, %s, s%d offen%s' % (GR + 1, V_OFF, srd(SRD_B1), S_T4, SNT))
        e('buffer_load_dword v%d, v%d, %s, s%d offen%s' % (GR + 2, V_OFF, srd(SRD_W2), S_T4, SNT))

    e('s_and_b32 s%d, s%d, 7' % (S_T0, S_H))
    e('s_cmp_lg_u32 s%d, 0' % S_T0)
    e('s_cbranch_scc1 L_noclear')
    for i in range(4):
        e('v_mov_b32 v%d, -1' % (V_ACC + i))
    e('v_lshlrev_b32 v%d, 4, v%d' % (V_X, V_L))
    e('s_mul_i32 s%d, s%d, 5120' % (S_T0, S_J))
    e('s_add_u32 s%d, s%d, s%d' % (S_T0, S_T0, S_U1))
    for i in range(5):
        if i == 4:
            e('s_add_u32 s%d, s%d, 4096' % (S_T0, S_T0))
        e('buffer_store_dwordx4 %s, v%d, %s, s%d offen offset:%d sc1' % (vr(V_ACC, 4), V_X, srd(SRD_MB), S_T0, 1024 * (i % 4)))
    a.label('L_noclear')
    a.vm = []
    gate_loads()
    ln_apply([(XF + 2 * i, XF + 2 * i + 1) for i in range(5)])
    ln_stats(XF)
    ln_apply([(XG, XF)])
    for t in range(20):
        e('v_readlane_b32 s%d, v%d, %d' % (S_HV + t, XG, t))
    W1A, W1B, B1A, B1B, W2P, C0 = V_W + 4, V_W + 5, V_W + 6, V_W + 7, V_W + 8, V_W + 9
    GA_ = V_W + 12
    GY = V_W + 24
    e('v_mov_b32 v%d, %s' % (C0, hexf(c0)))
    for t in range(20):
        e('v_mov_b32 v%d, 0' % (GY + t))
    e('s_mov_b32 s%d, 0' % S_CNT)
    a.label('L_gate')
    e('s_waitcnt vmcnt(0)')
    e('v_lshlrev_b32 v%d, 16, v%d' % (W1A, GR))
    e('v_and_b32 v%d, 0xffff0000, v%d' % (W1B, GR))
    e('v_lshlrev_b32 v%d, 16, v%d' % (B1A, GR + 1))
    e('v_and_b32 v%d, 0xffff0000, v%d' % (B1B, GR + 1))
    e('v_mov_b32 v%d, v%d' % (W2P, GR + 2))
    e('s_add_u32 s%d, s%d, 1024' % (S_T4, S_T4))
    gate_loads()

    def col_ops(t, tb):
        ga, gb, gp, xa, xb = tb, tb + 1, tb + 2, tb + 3, tb + 4
        s = S_HV + t
        return [
            'v_mul_f32 v%d, s%d, v%d' % (ga, s, W1A),
            'v_mul_f32 v%d, s%d, v%d' % (gb, s, W1B),
            'v_cvt_pk_bf16_f32 v%d, v%d, v%d' % (gp, ga, gb),
            'v_lshlrev_b32 v%d, 16, v%d' % (ga, gp),
            'v_and_b32 v%d, 0xffff0000, v%d' % (gb, gp),
            'v_add_f32 v%d, v%d, v%d' % (ga, ga, B1A),
            'v_add_f32 v%d, v%d, v%d' % (gb, gb, B1B),
            'v_cvt_pk_bf16_f32 v%d, v%d, v%d' % (gp, ga, gb),
            'v_lshlrev_b32 v%d, 16, v%d' % (ga, gp),
            'v_and_b32 v%d, 0xffff0000, v%d' % (gb, gp),
            'v_mul_f32 v%d, v%d, v%d' % (xa, ga, ga),
            'v_mul_f32 v%d, v%d, v%d' % (xb, gb, gb),
            'v_fma_f32 v%d, v%d, s%d, v%d' % (xa, xa, S_C1, C0),
            'v_fma_f32 v%d, v%d, s%d, v%d' % (xb, xb, S_C1, C0),
            'v_mul_f32 v%d, v%d, v%d' % (xa, xa, ga),
            'v_mul_f32 v%d, v%d, v%d' % (xb, xb, gb),
            'v_exp_f32 v%d, v%d' % (xa, xa),
            'v_exp_f32 v%d, v%d' % (xb, xb),
            'v_add_f32 v%d, 1.0, v%d' % (xa, xa),
            'v_add_f32 v%d, 1.0, v%d' % (xb, xb),
            'v_rcp_f32 v%d, v%d' % (xa, xa),
            'v_rcp_f32 v%d, v%d' % (xb, xb),
            'v_mul_f32 v%d, v%d, v%d' % (ga, ga, xa),
            'v_mul_f32 v%d, v%d, v%d' % (gb, gb, xb),
            'v_cvt_pk_bf16_f32 v%d, v%d, v%d' % (gp, ga, gb),
            'v_dot2_f32_bf16 v%d, v%d, v%d, v%d' % (GY + t, gp, W2P, GY + t),
        ]

    for t in range(0, 20, 2):
        o0, o1 = col_ops(t, GA_), col_ops(t + 1, GA_ + 5)
        for x, y in zip(o0, o1):
            e(x)
            e(y)
    e('s_add_u32 s%d, s%d, 1' % (S_CNT, S_CNT))
    e('s_cmp_lt_u32 s%d, 4' % S_CNT)
    a.flush_hazards()
    e('s_cbranch_scc1 L_gate')
    R1 = GA_
    for k in range(10):
        for op in merge_ops(1, R1 + k, GY + 2 * k, GY + 2 * k + 1, V_X, V_Y):
            e(op)
    for k in range(5):
        for op in merge_ops(2, GY + k, R1 + 2 * k, R1 + 2 * k + 1, V_X, V_Y):
            e(op)
    for k in range(2):
        for op in merge_ops(3, R1 + k, GY + 2 * k, GY + 2 * k + 1, V_X, V_Y):
            e(op)
    e(dpp('v_add_f32', GY + 4, GY + 4, GY + 4, 'quad_perm:[2,3,0,1]'))
    for op in merge_ops(4, GY, R1, R1 + 1, V_X, V_Y):
        e(op)
    e(dpp('v_add_f32', GY + 4, GY + 4, GY + 4, 'quad_perm:[1,0,3,2]'))
    e('v_bfrev_b32 v%d, v%d' % (T0, V_L))
    e('v_lshrrev_b32 v%d, 28, v%d' % (T0, T0))
    e('v_and_b32 v%d, 3, v%d' % (T1, T0))
    e('v_mul_u32_u24 v%d, 80, v%d' % (T2, VG))
    e('s_mul_i32 s%d, s%d, 320' % (S_T0, S_J))
    e('v_add_u32 v%d, s%d, v%d' % (T2, S_T0, T2))
    e('v_lshl_add_u32 v%d, v%d, 2, v%d' % (T0, T0, T2))
    e('v_lshl_add_u32 v%d, v%d, 2, v%d' % (T1, T1, T2))
    e('ds_write_b32 v%d, v%d offset:%d' % (T0, GY, LG))
    e('ds_write_b32 v%d, v%d offset:%d' % (T1, GY + 4, LG + 64))
    e('s_waitcnt vmcnt(0)')
    a.vm = []
    stamp(5)
    e('v_mul_u32_u24 v%d, 1280, v%d' % (V_OFF2, VG))
    e('v_lshl_add_u32 v%d, v%d, 4, v%d' % (V_OFF2, VC, V_OFF2))
    e('s_mul_i32 s%d, s%d, %d' % (S_T4, S_J, 32 * 1280))
    def wo_loads(i0, i1):
        for i in range(i0, i1):
            t, seg = divmod(i, 5)
            if i >= P['WOW']:
                a.wait_vm('wo%d' % (i - P['WOW']))
            if seg == 0 and t > 0:
                e('s_add_u32 s%d, s%d, %d' % (S_T4, S_T4, 4 * 1280))
            e('buffer_load_dwordx4 %s, v%d, %s, s%d offen offset:%d%s' %
              (vr(V_W + 4 * i, 4), V_OFF2, srd(SRD_WO), S_T4, seg * 256, ' nt' if P['WONT'] else ''), tag='wo%d' % i)

    wo_loads(0, P['WOPRE'])
    e('v_and_b32 v%d, 3, v%d' % (T0, VC))
    e('v_mul_u32_u24 v%d, %d, v%d' % (V_ORD, LQ_STRIDE, T0))
    e('v_lshrrev_b32 v%d, 2, v%d' % (T0, VC))
    e('v_lshl_add_u32 v%d, v%d, 5, v%d' % (V_ORD, T0, V_ORD))
    e('v_lshl_add_u32 v%d, v%d, 2, v%d' % (V_ORD, VG, V_ORD))
    e('s_lshl_b32 s%d, s%d, 7' % (S_T0, S_J))
    e('v_add_u32 v%d, s%d, v%d' % (V_ORD, S_T0, V_ORD))
    e('s_mul_i32 s%d, s%d, 2560' % (S_T0, S_J))
    e('v_add_u32 v%d, s%d, v%d' % (V_LSW, S_T0, V_DWR))
    e('v_and_b32 v%d, 7, v%d' % (V_HG, V_L))
    e('v_lshrrev_b32 v%d, 3, v%d' % (T1, V_L))
    e('v_mul_u32_u24 v%d, 320, v%d' % (V_MBA, V_HG))
    e('v_lshl_add_u32 v%d, v%d, 4, v%d' % (V_MBA, T1, V_MBA))
    e('v_lshlrev_b32 v%d, 3, v%d' % (V_OA, T1))
    e('v_mul_u32_u24 v%d, 160, v%d' % (T2, V_HG))
    e('v_lshl_add_u32 v%d, v%d, 4, v%d' % (T2, T1, T2))
    e('s_mul_i32 s%d, s%d, 40' % (S_T3, S_H))
    e('v_mov_b32 v%d, 0' % V_Y)
    e('buffer_load_dwordx2 %s, v%d, %s, s%d offen%s' % (vr(V_XOR, 2), V_OA, srd(SRD_X), S_T3, SNT), tag='xo')
    e('buffer_load_ushort v%d, v%d, %s, 0 offen%s' % (V_B2, V_Y, srd(SRD_B2), SNT), tag='xo')
    e('s_waitcnt lgkmcnt(0)')
    stamp(6)
    e('s_barrier')
    e('s_and_b32 s%d, s%d, 7' % (S_T0, S_H))
    e('s_xor_b32 s%d, s%d, 7' % (S_T1, S_W))
    e('s_or_b32 s%d, s%d, s%d' % (S_T0, S_T0, S_T1))
    e('s_cmp_lg_u32 s%d, 0' % S_T0)
    e('s_cbranch_scc1 L_noready')
    e('s_lshl_b32 s%d, s%d, 5' % (S_T0, S_B))
    e('v_mov_b32 v%d, 1' % T0)
    e('v_mov_b32 v%d, 0' % T1)
    e('s_mov_b64 exec, 1')
    saved = list(a.vm)
    e('buffer_atomic_add v%d, v%d, %s, s%d offen sc1' % (T0, T1, srd(SRD_DBG), S_T0))
    a.vm = saved
    e('s_mov_b64 exec, -1')
    a.label('L_noready')
    GB = V_SA
    e('ds_read_b128 %s, v%d offset:%d' % (vr(GB, 4), T2, LG))
    e('ds_read_b128 %s, v%d offset:%d' % (vr(GB + 4, 4), T2, LG + 80))
    e('s_waitcnt lgkmcnt(0)')
    for k in range(4):
        e('v_add_f32 v%d, v%d, v%d' % (GB + k, GB + k, GB + 4 + k))

    def oct_allreduce(regs):
        for c in ('quad_perm:[1,0,3,2]', 'quad_perm:[2,3,0,1]', 'row_half_mirror'):
            for r in regs:
                e(dpp('v_add_f32', r, r, r, c))

    oct_allreduce([GB + k for k in range(4)])
    bf16r2(GB, GB + 1, GB, GB + 1, V_X)
    bf16r2(GB + 2, GB + 3, GB + 2, GB + 3, V_Y)
    a.wait_vm('xo')
    e('v_lshlrev_b32 v%d, 16, v%d' % (V_B2, V_B2))
    for k in range(4):
        e('v_add_f32 v%d, v%d, v%d' % (GB + k, GB + k, V_B2))
    bf16r2(GB, GB + 1, GB, GB + 1, V_X)
    bf16r2(GB + 2, GB + 3, GB + 2, GB + 3, V_Y)
    for k in range(4):
        e('v_mul_f32 v%d, s%d, v%d' % (GB + 4 + k, S_LOG2E, GB + k))
    for k in range(4):
        e('v_exp_f32 v%d, -v%d' % (GB + 4 + k, GB + 4 + k))
    for k in range(4):
        e('v_add_f32 v%d, 1.0, v%d' % (GB + 4 + k, GB + 4 + k))
    for k in range(4):
        e('v_rcp_f32 v%d, v%d' % (GB + 4 + k, GB + 4 + k))
    for k in range(4):
        e('v_mul_f32 v%d, v%d, v%d' % (GB + k, GB + k, GB + 4 + k))
    bf16r2(V_GF, V_GF + 1, GB, GB + 1, V_X)
    bf16r2(V_GF + 2, V_GF + 3, GB + 2, GB + 3, V_Y)
    e('v_lshlrev_b32 v%d, 16, v%d' % (V_XO, V_XOR))
    e('v_and_b32 v%d, 0xffff0000, v%d' % (V_XO + 1, V_XOR))
    e('v_lshlrev_b32 v%d, 16, v%d' % (V_XO + 2, V_XOR + 1))
    e('v_and_b32 v%d, 0xffff0000, v%d' % (V_XO + 3, V_XOR + 1))
    wo_loads(P['WOPRE'], 40)
    a.wait_vm('wo39')
    e('s_cmp_lg_u32 s%d, 7' % S_W)
    e('s_cbranch_scc1 L_rdy_ok')
    e('s_mov_b32 s%d, 0' % S_CNT)
    e('s_lshl_b32 s%d, s%d, 5' % (S_T1, S_B))
    e('v_mov_b32 v%d, 0' % V_Y)
    a.label('L_rdy')
    e('buffer_load_dword v%d, v%d, %s, s%d offen sc1' % (V_X, V_Y, srd(SRD_DBG), S_T1))
    e('s_waitcnt vmcnt(0)')
    e('v_readfirstlane_b32 s%d, v%d' % (S_T0, V_X))
    e('s_cmp_ge_u32 s%d, 4' % S_T0)
    e('s_cbranch_scc1 L_rdy_ok')
    e('s_add_u32 s%d, s%d, 1' % (S_CNT, S_CNT))
    e('s_cmp_ge_u32 s%d, 0x4000' % S_CNT)
    e('s_cbranch_scc1 L_rdy_ok')
    e('s_sleep 32')
    e('s_branch L_rdy')
    a.label('L_rdy_ok')
    a.vm = []
    e('s_setprio 2')
    stamp(8)
    e('s_barrier')
    stamp(9)
    O0, O1 = XQ + 1, XQ + 2
    assert O0 % 2 == 0
    e('ds_read2_b32 %s, v%d offset0:%d offset1:%d' % (vr(O0, 2), V_ORD, LQ // 4, LQ // 4 + 4))
    e('s_waitcnt lgkmcnt(0)')
    for c in ('quad_perm:[1,0,3,2]', 'quad_perm:[2,3,0,1]'):
        for r in (O0, O1):
            e(dpp('v_add_f32', r, r, r, c))
    e('v_cvt_pk_bf16_f32 v%d, v%d, v%d' % (O0, O0, O0))
    e('v_cvt_pk_bf16_f32 v%d, v%d, v%d' % (O1, O1, O1))
    build_A(0, O0, 0)
    for t in range(8):
        for seg in range(5):
            mfma(V_SA + 4 * seg, t & 1, V_W + 4 * (5 * t + seg), None if t == 0 else V_SA + 4 * seg)
            if seg == 0 and t + 1 < 8:
                build_A((t + 1) & 1, O0 + ((t + 1) & 1), 4 * ((t + 1) >> 1))
    e('s_mov_b32 exec_hi, 0')
    for seg in range(5):
        e('ds_write_b128 v%d, %s offset:%d' % (V_LSW, vr(V_SA + 4 * seg, 4), LS + seg * 512))
    e('s_mov_b32 exec_hi, -1')
    e('s_cmp_lg_u32 s%d, 7' % S_W)
    e('s_waitcnt lgkmcnt(0)')
    e('s_barrier')
    e('s_cbranch_scc1 L_hend')
    stamp(10)
    e('s_mov_b32 exec_hi, 0xff')
    PB = V_W

    def poll_loads():
        for i in range(4):
            e('buffer_load_dwordx4 %s, v%d, %s, s%d offen offset:%d sc1' % (vr(PB + 4 * i, 4), V_MBA, srd(SRD_MB), S_U1, 80 * i))

    e('s_mov_b32 s%d, 0' % S_CNT)
    a.label('L_poll')
    poll_loads()
    e('s_waitcnt vmcnt(0)')
    e('v_max3_u32 v%d, v%d, v%d, v%d' % (V_X, PB, PB + 1, PB + 2))
    e('v_max3_u32 v%d, v%d, v%d, v%d' % (V_Y, PB + 3, PB + 4, PB + 5))
    for k in range(6, 14, 4):
        e('v_max3_u32 v%d, v%d, v%d, v%d' % (V_X, V_X, PB + k, PB + k + 1))
        e('v_max3_u32 v%d, v%d, v%d, v%d' % (V_Y, V_Y, PB + k + 2, PB + k + 3))
    e('v_max3_u32 v%d, v%d, v%d, v%d' % (V_X, V_X, PB + 14, PB + 15))
    e('v_max_u32 v%d, v%d, v%d' % (V_X, V_X, V_Y))
    e('v_cmp_eq_u32 vcc, -1, v%d' % V_X)
    e('s_cbranch_vccz L_got')
    e('s_add_u32 s%d, s%d, 1' % (S_CNT, S_CNT))
    e('s_cmp_ge_u32 s%d, 0x4000' % S_CNT)
    e('s_cbranch_scc1 L_got')
    if P['POLL_SLEEP']:
        e('s_sleep %d' % P['POLL_SLEEP'])
    e('s_branch L_poll')
    a.label('L_got')
    stamp(12)
    if P['DEBUG']:
        e('v_writelane_b32 v0, s%d, 14' % S_CNT)
    for i in (0, 2):
        for k in range(4):
            e('v_add_f32 v%d, v%d, v%d' % (PB + 4 * i + k, PB + 4 * i + k, PB + 4 * i + 4 + k))
    for k in range(4):
        e('v_add_f32 v%d, v%d, v%d' % (PB + k, PB + k, PB + 8 + k))
    oct_allreduce([PB + k for k in range(4)])
    bf16r2(PB, PB + 1, PB, PB + 1, V_X)
    bf16r2(PB + 2, PB + 3, PB + 2, PB + 3, V_Y)
    for k in range(4):
        e('v_mul_f32 v%d, v%d, v%d' % (PB + k, PB + k, V_GF + k))
    bf16r2(PB, PB + 1, PB, PB + 1, V_X)
    bf16r2(PB + 2, PB + 3, PB + 2, PB + 3, V_Y)
    for k in range(4):
        e('v_add_f32 v%d, v%d, v%d' % (PB + k, PB + k, V_XO + k))
    e('v_cvt_pk_bf16_f32 v%d, v%d, v%d' % (PB, PB, PB + 1))
    e('v_cvt_pk_bf16_f32 v%d, v%d, v%d' % (PB + 1, PB + 2, PB + 3))
    e('v_cmp_eq_u32 vcc, 0, v%d' % V_HG)
    e('s_and_b64 exec, exec, vcc')
    e('buffer_store_dwordx2 %s, v%d, %s, s%d offen' % (vr(PB, 2), V_OA, srd(SRD_OUT), S_T3))
    stamp(13)
    a.label('L_hend')
    stamp_out()
    a.label('L_end', flush=False)
    e('s_endpgm')
    a.lines = a.lines[:cut1] + a.lines[cut2:] + a.lines[cut1:cut2]

    a.raw('.section .rodata,"a"')
    a.raw('.p2align 6')
    a.raw('.amdhsa_kernel %s_kernel' % NAME)
    a.raw('  .amdhsa_next_free_vgpr 256')
    a.raw('  .amdhsa_next_free_sgpr %d' % (100 if P['DEBUG'] else 98))
    a.raw('  .amdhsa_accum_offset 256')
    a.raw('  .amdhsa_group_segment_fixed_size 0')
    a.raw('  .amdhsa_kernarg_size 104')
    a.raw('  .amdhsa_user_sgpr_count 2')
    a.raw('  .amdhsa_user_sgpr_kernarg_segment_ptr 1')
    a.raw('  .amdhsa_system_sgpr_workgroup_id_x 1')
    a.raw('  .amdhsa_float_denorm_mode_32 3')
    a.raw('.end_amdhsa_kernel')
    return a


if __name__ == '__main__':
    out = sys.argv[1] if len(sys.argv) > 1 else 'cdna_kernels/%s.s' % NAME
    kw = {}
    for x in sys.argv[2:]:
        k, v = x.split('=')
        kw[k] = int(v)
    a = gen(**kw)
    open(out, 'w').write(a.text())
    print('wrote', out, 'lines', len(a.lines), 'nop states', a.nops)
```
